```python
import torch

def _softmax(x, axis=-1):
    return torch.softmax(x, dim=axis)
def _gelu(x):
    return torch.nn.functional.gelu(x, approximate="tanh")
def _silu(x):
    return torch.nn.functional.silu(x)
def _sigmoid(x):
    return torch.sigmoid(x)
def _layernorm(x, axis=-1, eps=1e-5):
    m = x.mean(dim=axis, keepdim=True)
    v = x.var(dim=axis, keepdim=True, unbiased=False)
    return (x - m) / torch.sqrt(v + eps)
def _scatter_add(tgt, idx, src, axis=0):
    return tgt.clone().index_add_(axis, idx, src)
def _segment_sum(src, seg, n):
    out = torch.zeros((n,) + src.shape[1:], dtype=src.dtype)
    return out.index_add_(0, seg, src)
def _pad(x, pw):
    flat = tuple(v for pair in reversed(pw) for v in pair)
    return torch.nn.functional.pad(x, flat)

kernel_name = 'concat_heads__gqa_block_cached__gqa_block_cached__near_ridge'

def setup_inputs():

    _w = (lambda a: (lambda t: t.to(torch.bfloat16) if t.is_floating_point() else t)(torch.as_tensor(a)))
    def _A_setup():
        B, Sq, D = 16, 96, 640
        Hq, Hkv, Sk, Dh = 32, 32, 512, 192
        assert Hq % Hkv == 0, (Hq, Hkv)
        return {
            "x": _w((lambda *s: torch.randn(*s, dtype=torch.bfloat16) * 0.8)(B, Sq, D)),
            "k_cache": _w((lambda *s: torch.randn(*s, dtype=torch.bfloat16) * 0.8)(B, Hkv, Sk, Dh)),
            "v_cache": _w((lambda *s: torch.randn(*s, dtype=torch.bfloat16) * 0.05)(B, Hkv, Sk, Dh)),
            "wq": _w((lambda *s: torch.randn(*s, dtype=torch.bfloat16) * 0.8)(D, Hq * Dh) * (D ** -0.5)),
            "wo": _w((lambda *s: torch.randn(*s, dtype=torch.bfloat16) * 0.05)(Hq * Dh, D) * ((Hq * Dh) ** -0.5)),
        }
    _A_in = _A_setup()

    def _B_setup():
        B, Sq, D = 16, 96, 640
        Hq, Hkv, Sk, Dh = 32, 32, 512, 192
        assert Hq % Hkv == 0, (Hq, Hkv)
        return {
            "x": _w((lambda *s: torch.randn(*s, dtype=torch.bfloat16) * 0.8)(B, Sq, D)),
            "k_cache": _w((lambda *s: torch.randn(*s, dtype=torch.bfloat16) * 0.8)(B, Hkv, Sk, Dh)),
            "v_cache": _w((lambda *s: torch.randn(*s, dtype=torch.bfloat16) * 0.05)(B, Hkv, Sk, Dh)),
            "wq": _w((lambda *s: torch.randn(*s, dtype=torch.bfloat16) * 0.8)(D, Hq * Dh) * (D ** -0.5)),
            "wo": _w((lambda *s: torch.randn(*s, dtype=torch.bfloat16) * 0.05)(Hq * Dh, D) * ((Hq * Dh) ** -0.5)),
        }
    _B_in = _B_setup()

    return {
        "A_x": _A_in["x"],
        "A_k_cache": _A_in["k_cache"],
        "A_v_cache": _A_in["v_cache"],
        "A_wq": _A_in["wq"],
        "A_wo": _A_in["wo"],
        "B_x": _B_in["x"],
        "B_k_cache": _B_in["k_cache"],
        "B_v_cache": _B_in["v_cache"],
        "B_wq": _B_in["wq"],
        "B_wo": _B_in["wo"],
    }

def reference(A_x, A_k_cache, A_v_cache, A_wq, A_wo, B_x, B_k_cache, B_v_cache, B_wq, B_wo):
    def _A_ref(x, k_cache, v_cache, wq, wo):
        B, Sq, D = x.shape
        Hq, Dh = 32, 192
        Hkv = k_cache.shape[1]
        rep = Hq // Hkv
        q = (lambda x, *d: x.permute(*d))((x @ wq).reshape(B, Sq, Hq, Dh), 0, 2, 1, 3)
        k = (lambda x, n, axis: torch.repeat_interleave(x, n, dim=axis))(k_cache, rep, axis=1)
        v = (lambda x, n, axis: torch.repeat_interleave(x, n, dim=axis))(v_cache, rep, axis=1)
        scores = torch.einsum("bhqd,bhkd->bhqk", q, k) * (Dh ** -0.5)
        p = _softmax(scores, axis=-1)
        o = torch.einsum("bhqk,bhkd->bhqd", p, v)
        return (lambda x, *d: x.permute(*d))(o, 0, 2, 1, 3).reshape(B, Sq, Hq * Dh) @ wo

    def _B_ref(x, k_cache, v_cache, wq, wo):
        B, Sq, D = x.shape
        Hq, Dh = 32, 192
        Hkv = k_cache.shape[1]
        rep = Hq // Hkv
        q = (lambda x, *d: x.permute(*d))((x @ wq).reshape(B, Sq, Hq, Dh), 0, 2, 1, 3)
        k = (lambda x, n, axis: torch.repeat_interleave(x, n, dim=axis))(k_cache, rep, axis=1)
        v = (lambda x, n, axis: torch.repeat_interleave(x, n, dim=axis))(v_cache, rep, axis=1)
        scores = torch.einsum("bhqd,bhkd->bhqk", q, k) * (Dh ** -0.5)
        p = _softmax(scores, axis=-1)
        o = torch.einsum("bhqk,bhkd->bhqd", p, v)
        return (lambda x, *d: x.permute(*d))(o, 0, 2, 1, 3).reshape(B, Sq, Hq * Dh) @ wo

    a = _A_ref(A_x, A_k_cache, A_v_cache, A_wq, A_wo)
    b = _B_ref(B_x, B_k_cache, B_v_cache, B_wq, B_wo)
    return torch.concatenate([a, b], axis=-1)
```

```python
NAME = "concat_heads__gqa_block_cached__gqa_block_cached__near_ridge"
class Asm:
    def __init__(self):
        self.lines = []
        self.nlab = 0
    def __call__(self, s):
        for l in s.strip("\n").split("\n"):
            self.lines.append("    " + l.strip() if not l.strip().endswith(":") else l.strip())
    def label(self, name):
        self.lines.append(name + ":")
    def newlab(self, p="L"):
        self.nlab += 1
        return f"{p}_{self.nlab}"
    def text(self):
        return "\n".join(self.lines) + "\n"

def kernel_desc(name, vgpr=256, sgpr=102, accum=256):
    return f""".p2align 6
.amdhsa_kernel {name}
  .amdhsa_next_free_vgpr {vgpr}
  .amdhsa_next_free_sgpr {sgpr}
  .amdhsa_accum_offset {accum}
  .amdhsa_group_segment_fixed_size 0
  .amdhsa_kernarg_size 104
  .amdhsa_user_sgpr_count 2
  .amdhsa_user_sgpr_kernarg_segment_ptr 1
  .amdhsa_system_sgpr_workgroup_id_x 1
.end_amdhsa_kernel
"""

def wrap(launch_lines, kernels):
    s = "".join("; " + l + "\n" for l in launch_lines)
    s += '.amdgcn_target "amdgcn-amd-amdhsa--gfx950"\n.text\n'
    for name, body, vgpr, sgpr, accum in kernels:
        s += f".globl {name}\n.p2align 8\n.type {name},@function\n{name}:\n{body}\n"
    s += '.section .rodata,"a"\n'
    for name, body, vgpr, sgpr, accum in kernels:
        s += kernel_desc(name, vgpr, sgpr, accum)
    return s
```

```python
import re
TRANS = ("v_exp_f32", "v_log_f32", "v_rcp_f32", "v_rsq_f32", "v_sqrt_f32", "v_sin_f32", "v_cos_f32")

def regs_of(op):
    op = op.strip()
    op = op.lstrip("-")
    if op.startswith("abs(") or op.startswith("neg("):
        op = op[4:-1]
    op = op.strip("|")
    m = re.fullmatch(r"([vsa])(\d+)", op)
    if m: return {(m.group(1), int(m.group(2)))}
    m = re.fullmatch(r"([vsa])\[(\d+):(\d+)\]", op)
    if m: return {(m.group(1), i) for i in range(int(m.group(2)), int(m.group(3)) + 1)}
    if op == "vcc": return {("s", "vcc")}
    if op in ("vcc_lo", "vcc_hi"): return {("s", "vcc")}
    if op == "exec": return {("s", "exec")}
    if op == "m0": return {("s", "m0")}
    return set()

class Ins:
    __slots__ = ("text", "mn", "ops", "rd", "wr", "kind", "A", "B", "C", "D", "passes", "label", "target", "mods")
    def __init__(self, text):
        self.text = text
        t = text.split(";")[0].strip()
        t = re.sub(r"\s+op_sel(_hi)?:\[[^\]]*\]", "", t)
        self.label = None; self.target = None
        self.rd = set(); self.wr = set(); self.kind = "other"; self.passes = 0
        self.A = self.B = self.C = self.D = set()
        self.mn = ""; self.ops = []; self.mods = ""
        if not t: self.kind = "nop0"; return
        if t.endswith(":"):
            self.label = t[:-1]; self.kind = "label"; return
        if t.startswith("."):
            self.kind = "nop0"; return
        parts = t.split(None, 1)
        mn = parts[0]; self.mn = mn
        rest = parts[1] if len(parts) > 1 else ""
        ops = [o.strip() for o in rest.split(",")] if rest else []
        if ops:
            sp = ops[-1].split(None, 1)
            ops[-1] = sp[0]
            self.mods = sp[1] if len(sp) > 1 else ""
        self.ops = ops
        R = [regs_of(o) for o in ops]
        allr = lambda xs: set().union(*xs) if xs else set()
        if mn.startswith("v_mfma"):
            self.kind = "mfma"
            self.D, self.A, self.B, self.C = R[0], R[1], R[2], R[3]
            self.wr = set(R[0]); self.rd = allr(R[1:])
            self.passes = 8 if "32x32" in mn else 4
        elif mn.startswith("v_"):
            self.kind = "valu"
            base = mn.replace("_e32", "").replace("_e64", "")
            if base in TRANS: self.kind = "trans"
            if mn.startswith("v_permlane"):
                self.kind = "permlane"; self.wr = allr(R); self.rd = allr(R)
            elif mn.startswith("v_readfirstlane") or mn.startswith("v_readlane"):
                self.kind = "readlane"; self.wr = set(R[0]); self.rd = allr(R[1:])
            elif mn.startswith("v_cmp"):
                self.wr = set(R[0]); self.rd = allr(R[1:])
            elif mn == "v_nop":
                pass
            else:
                self.wr = set(R[0]); self.rd = allr(R[1:])
                if base.startswith("v_fmac") or base.startswith("v_dot2c") or base.startswith("v_pk_fmac"):
                    self.rd |= R[0]
                if "_dpp" in mn or "dpp" in self.mods or "row_" in self.mods: self.kind = "dpp"
        elif mn.startswith("ds_"):
            self.kind = "ds"
            if mn.startswith("ds_read") or mn.startswith("ds_bpermute") or mn.startswith("ds_swizzle"):
                self.wr = set(R[0]); self.rd = allr(R[1:])
            else:
                self.rd = allr(R)
        elif mn.startswith("buffer_") or mn.startswith("global_"):
            self.kind = "vmem"
            islds = re.search(r"\blds\b", self.mods) is not None or "_lds_" in mn
            if islds:
                self.rd = allr(R) | {("s", "m0")}
            elif "_load" in mn:
                self.wr = set(R[0]); self.rd = allr(R[1:])
            else:
                self.rd = allr(R)
        elif mn.startswith("s_"):
            self.kind = "salu"
            if mn.startswith("s_cbranch") or mn == "s_branch":
                self.kind = "branch"; self.target = ops[0]
            elif mn == "s_endpgm": self.kind = "end"
            elif mn in ("s_waitcnt", "s_barrier", "s_nop", "s_sleep", "s_setprio"): pass
            elif mn.startswith("s_cmp") or mn.startswith("s_bitcmp"):
                self.rd = allr(R)
            elif mn.startswith("s_load") or mn.startswith("s_mem"):
                self.kind = "smem"; self.wr = set(R[0]); self.rd = allr(R[1:])
            else:
                self.wr = set(R[0]); self.rd = allr(R[1:])
                if "saveexec" in mn: self.wr |= {("s", "exec")}
    def states(self):
        if self.kind in ("label", "nop0"): return 0
        if self.mn == "s_nop": return int(self.ops[0], 0) + 1
        return 1
    def isvalu(self): return self.kind in ("valu", "trans", "permlane", "readlane", "dpp")

def vonly(s): return {r for r in s if r[0] in "va"}
def sonly(s): return {r for r in s if r[0] == "s"}

def need(p, c):
    n = 0
    if p.kind == "mfma":
        big = {8: 12, 4: 8}[p.passes]
        if c.kind == "mfma":
            if p.D & (c.A | c.B): n = max(n, big)
            if p.D & c.C:
                if not (p.D == c.C and p.passes == c.passes): n = max(n, big - 2)
            elif p.D & c.D:
                n = max(n, big - 2)
        elif c.isvalu():
            if p.D & (c.rd | c.wr): n = max(n, big)
            if p.C & c.wr: n = max(n, {8: 7, 4: 3}[p.passes])
        elif c.kind in ("ds", "vmem"):
            if p.D & (c.rd | c.wr): n = max(n, big)
    elif p.isvalu():
        vw = vonly(p.wr); sw = sonly(p.wr)
        if c.kind == "mfma" and vw & c.rd: n = max(n, 2)
        if c.kind == "mfma" and ("s", "exec") in sw: n = max(n, 4)
        if c.kind == "permlane" and vw & c.rd: n = max(n, 2)
        if c.kind == "dpp" and vw & c.rd: n = max(n, 2)
        if c.kind == "readlane" and vw & c.rd: n = max(n, 1)
        if p.kind == "trans" and (c.isvalu() or c.kind == "mfma") and vw & c.rd: n = max(n, 1 if c.kind != "mfma" else 2)
        if sw:
            if c.isvalu() and (sw & c.rd or (("s", "vcc") in sw and c.mn.startswith("v_cndmask"))): n = max(n, 2)
            if c.kind == "readlane" and sw & c.rd: n = max(n, 4)
            if c.kind == "vmem" and sw & c.rd: n = max(n, 5)
            if c.kind in ("salu", "branch") and (sw & c.rd): n = max(n, 1)
            if c.kind == "branch" and "vcc" in c.mn and ("s", "vcc") in sw: n = max(n, 1)
    elif p.kind == "salu":
        if ("s", "m0") in p.wr and c.kind == "vmem" and ("s", "m0") in c.rd: n = max(n, 1)
    elif p.kind == "vmem":
        if ("store" in p.mn) and ("x3" in p.mn or "x4" in p.mn):
            data = regs_of(p.ops[0]) if p.mn.startswith("buffer") else regs_of(p.ops[1])
            if data & c.wr: n = max(n, 2)
    return n

def fix_hazards(lines, verbose=False):
    total = 0
    while True:
        ins = [Ins(l) for l in lines]
        lab = {x.label: i for i, x in enumerate(ins) if x.label}
        fixes = {}
        for i, p in enumerate(ins):
            if p.kind not in ("mfma", "valu", "trans", "permlane", "readlane", "dpp", "salu", "vmem"): continue
            if p.kind == "salu" and ("s", "m0") not in p.wr: continue
            if p.kind == "vmem" and "store" not in p.mn: continue
            maxd = 12 if p.kind == "mfma" else 5
            stack = [(i + 1, 0)]
            seen = {}
            while stack:
                j, d = stack.pop()
                while j < len(ins) and d < maxd:
                    if seen.get(j, 99) <= d: break
                    seen[j] = d
                    c = ins[j]
                    n = need(p, c) if c.states() else 0
                    if n > d:
                        fixes[j] = max(fixes.get(j, 0), n - d)
                        if verbose: print("hazard", p.text.strip(), "->", c.text.strip(), "have", d, "need", n)
                        break
                    d += c.states()
                    if c.kind == "end": break
                    if c.kind == "branch":
                        stack.append((lab[c.target], d))
                        if c.mn == "s_branch": break
                    j += 1
        if not fixes: break
        out = []
        for j, l in enumerate(lines):
            if j in fixes:
                out.append(f"    s_nop {fixes[j]-1}")
                total += fixes[j]
            out.append(l)
        lines = out
    return lines, total

def add_lgkm(lines, drain=True):
    out = []; q = []
    for l in lines:
        c = Ins(l)
        if c.mn == "s_waitcnt" and "lgkmcnt(0)" in l: q = []
        touched = c.rd | c.wr
        last = -1
        for k, w in enumerate(q):
            if w & touched: last = k
        if last >= 0:
            n = len(q) - 1 - last
            out.append(f"    s_waitcnt lgkmcnt({n})")
            q = q[last + 1:]
        if c.kind == "ds":
            if len(q) >= 15:
                out.append(f"    s_waitcnt lgkmcnt(14)")
                q = q[len(q) - 14:]
            q.append(set(c.wr))
        out.append(l)
    if drain and q:
        out.append("    s_waitcnt lgkmcnt(0)")
    return out
```

```python
import sys, math, struct
from asmlib import *
from isa import *

KV_SLOT = 24576
PB0 = 73728
PBSZ = 45056
UNIT = 36864
QOFF = 32 * 4 * 8 * UNIT
TSOFF = QOFF + 256 * 5 * UNIT
WS_BYTES = 438042624
CSC = (192 ** -0.5) * math.log2(math.e)
def fbits(x): return "0x%08x" % struct.unpack("<I", struct.pack("<f", x))[0]

SRD_K, SRD_V, SRD_WQ, SRD_WO, SRD_X, SRD_WS, SRD_OUT, SRD_DBG = [f"s[{4*i+4}:{4*i+7}]" for i in range(8)]
LANE = "v255"

class G:
    def __init__(self): self.L = []
    def __call__(self, s):
        for l in s.strip("\n").split("\n"):
            l = l.strip()
            if not l: continue
            self.L.append(l if l.endswith(":") else "    " + l)
    def ext(self, lines): self.L += lines

def vr(b, n=1): return f"v{b}" if n == 1 else f"v[{b}:{b+n-1}]"

def emit_f(g, dst, row, tmp):
    g(f"""
    v_lshlrev_b32 {tmp}, 1, {row}
    v_and_b32 {tmp}, 4, {tmp}
    v_bfe_u32 {dst}, {row}, 2, 2
    v_or_b32 {dst}, {dst}, {tmp}
    """)

def common(g):
    g(f"""
    s_cmp_ge_u32 s2, 256
    s_cbranch_scc1 L_end
    s_load_dwordx16 s[64:79], s[0:1], 0
    s_load_dwordx8 s[80:87], s[0:1], 64
    s_load_dwordx2 s[88:89], s[0:1], 96
    v_lshrrev_b32 v1, 6, v0
    v_and_b32 {LANE}, 63, v0
    s_and_b32 s40, s2, 7
    v_readfirstlane_b32 s3, v1
    s_lshr_b32 s41, s2, 3
    s_lshr_b32 s38, s40, 2
    s_and_b32 s50, s40, 3
    s_lshr_b32 s51, s41, 4
    s_lshl_b32 s36, s50, 3
    s_add_u32 s36, s36, s51
    s_and_b32 s37, s41, 15
    s_lshl_b32 s39, s50, 1
    s_add_u32 s39, s39, s51
    s_lshl_b32 s42, s38, 4
    s_add_u32 s42, s42, s37
    s_lshl_b32 s43, s40, 2
    s_lshr_b32 s51, s41, 3
    s_add_u32 s43, s43, s51
    s_and_b32 s44, s41, 7
    s_mul_i32 s45, s2, {4*UNIT}
    s_add_u32 s45, s45, {QOFF}
    s_mov_b32 s6, {16*32*196608}
    s_mov_b32 s7, 0x20000
    s_mov_b32 s10, {16*32*196608}
    s_mov_b32 s11, 0x20000
    s_mov_b32 s14, {640*6144*2}
    s_mov_b32 s15, 0x20000
    s_mov_b32 s18, {640*6144*2}
    s_mov_b32 s19, 0x20000
    s_mov_b32 s22, {16*96*640*2}
    s_mov_b32 s23, 0x20000
    s_mov_b32 s26, {WS_BYTES}
    s_mov_b32 s27, 0x20000
    s_mov_b32 s30, {16*96*1280*2}
    s_mov_b32 s31, 0x20000
    s_mov_b32 s34, 256
    s_mov_b32 s35, 0x20000
    s_waitcnt lgkmcnt(0)
    s_cmp_eq_u32 s38, 0
    s_cselect_b32 s20, s64, s74
    s_cselect_b32 s21, s65, s75
    s_cselect_b32 s4, s66, s76
    s_cselect_b32 s5, s67, s77
    s_cselect_b32 s8, s68, s78
    s_cselect_b32 s9, s69, s79
    s_cselect_b32 s12, s70, s80
    s_cselect_b32 s13, s71, s81
    s_cselect_b32 s16, s72, s82
    s_cselect_b32 s17, s73, s83
    s_mov_b32 s28, s84
    s_mov_b32 s29, s85
    s_mov_b32 s32, s86
    s_mov_b32 s33, s87
    s_mov_b32 s24, s88
    s_mov_b32 s25, s89
    s_cmp_eq_u32 s3, 3
    s_cbranch_scc1 L_loader
    s_cmp_ge_u32 s3, 4
    s_cbranch_scc1 L_proj
    """)

O_ = 0; Q_ = 96; S_ = (144, 160); P_ = 176; F_ = 184; NF = 8
KB = 216; VB = 220; KC = 224; VC = 228
VM, VMC, VTHR, VL, VMAX, T0, T1, T2, VQOFF, VOOFF, VFLAG = [f"v{i}" for i in range(232, 243)]
LEAD = 6

def frag_read(j):
    b = F_ + 4 * (j % NF)
    if j < 12:
        return [f"ds_read_b128 {vr(b,4)}, v{KC + (j & 3)} offset:{128 * (j >> 2)}"]
    jj = j - 12; t = jj // 6; dt = jj % 6
    off = 16 * 384 * t + 128 * (dt >> 1)
    return [f"ds_read_b64_tr_b16 {vr(b + 2*u, 2)}, v{VC + 2*u + (dt & 1)} offset:{off}" for u in range(2)]

def mfma_att(j, snxt):
    b = F_ + 4 * (j % NF)
    if j < 12:
        c = "0" if j == 0 else vr(snxt, 16)
        return f"v_mfma_f32_32x32x16_bf16 {vr(snxt,16)}, {vr(b,4)}, {vr(Q_+4*j,4)}, {c}"
    jj = j - 12; t = jj // 6; dt = jj % 6
    return f"v_mfma_f32_32x32x16_bf16 {vr(O_+16*dt,16)}, {vr(b,4)}, {vr(P_+4*t,4)}, {vr(O_+16*dt,16)}"

def softmax_ops(s):
    ops = []
    fma = lambda e: f"v_fma_f32 v{s+e}, v{s+e}, s46, -{VMC}"
    ex = lambda e: f"v_exp_f32 v{s+e}, v{s+e}"
    add = lambda e: f"v_add_f32 {VL}, {VL}, v{s+e}"
    cvt = lambda i: f"v_cvt_pk_bf16_f32 v{P_+i}, v{s+2*i}, v{s+2*i+1}"
    for k in range(19):
        if k < 16: ops.append(fma(k))
        if 0 <= k - 1 < 16: ops.append(ex(k - 1))
        if 0 <= k - 3 < 16:
            ops.append(add(k - 3))
            if (k - 3) & 1: ops.append(cvt((k - 3) >> 1))
    return ops

def max_ops(s):
    ops = [f"v_max3_f32 {VMAX}, v{s}, v{s+1}, v{s+2}"]
    for k in range(6): ops.append(f"v_max3_f32 {VMAX}, {VMAX}, v{s+3+2*k}, v{s+4+2*k}")
    ops.append(f"v_max_f32 {VMAX}, {VMAX}, v{s+15}")
    return ops

def tick_head(g):
    for i in range(4): g(f"v_add_u32 v{KC+i}, s48, v{KB+i}")
    for i in range(4): g(f"v_add_u32 v{VC+i}, s48, v{VB+i}")
    g(f"""
    s_add_u32 s48, s48, {KV_SLOT}
    s_cmp_eq_u32 s48, {3*KV_SLOT}
    s_cselect_b32 s48, 0, s48
    """)

def q_loads(g):
    for s in range(12):
        if s % 4 == 0: g(f"s_add_u32 s53, s52, {4096*(s>>2)}")
        g(f"buffer_load_dwordx4 {vr(Q_+4*s,4)}, {VQOFF}, {SRD_WS}, s53 offen offset:{1024*(s&3)}")
    g(f"s_add_u32 s52, s52, {UNIT}")

def m_init(g):
    g(f"""
    v_mov_b32 {T0}, {VMAX}
    v_mov_b32 {T1}, {VMAX}
    v_permlane32_swap_b32 {T0}, {T1}
    v_max_f32 {VM}, {T0}, {T1}
    v_mul_f32 {VMC}, s46, {VM}
    v_add_f32 {VTHR}, s47, {VM}
    v_mov_b32 {VL}, 0
    """)

def zero_O(g):
    for i in range(4): g(f"v_mov_b32 v{P_+i}, 0")
    for dt in range(6):
        g(f"v_mfma_f32_32x32x16_bf16 {vr(O_+16*dt,16)}, {vr(P_,4)}, {vr(P_,4)}, 0")

def signal(g):
    g(f"""
    s_waitcnt vmcnt(0)
    v_mov_b32 {T0}, s49
    s_mov_b64 exec, 1
    buffer_atomic_add {T0}, {VFLAG}, {SRD_DBG}, 0 offen
    s_mov_b64 exec, -1
    """)

def att_tick(g, par, mode, rare):
    scur, snxt = S_[par], S_[par ^ 1]
    b = G()
    b("s_barrier")
    stamp(b, 0)
    tick_head(b)
    for j in range(LEAD):
        for r in frag_read(j): b(r)
    if mode == "t15": b("s_waitcnt vmcnt(0)")
    sm = softmax_ops(scur)
    mx = max_ops(snxt) + [f"v_cmp_gt_f32 vcc, {VMAX}, {VTHR}"]
    pre = 10
    for o in sm[:pre]: b(o)
    sm = sm[pre:]
    for j in range(24):
        b(mfma_att(j, snxt))
        if j + LEAD < 24:
            for r in frag_read(j + LEAD): b(r)
        if j == 11 and mode == "t14": q_loads(b)
        if j < 12:
            n = 4
            for o in sm[:n]: b(o)
            sm = sm[n:]
        elif j >= 15:
            for o in mx[:2]: b(o)
            mx = mx[2:]
    assert not sm and not mx
    g.ext(add_lgkm(b.L))
    if mode != "t15":
        lab = f"A_rare{len(rare)}"
        g(f"s_cbranch_vccnz {lab}\n{lab}_ret:")
        rare.append(lab)
    else:
        g(f"""
        v_mov_b32 {T0}, {VL}
        v_mov_b32 {T1}, {VL}
        v_permlane32_swap_b32 {T0}, {T1}
        v_add_f32 {T0}, {T0}, {T1}
        v_rcp_f32 {T2}, {T0}
        s_mov_b32 s53, s54
        """)
        for dt in range(6):
            o = O_ + 16 * dt
            for r in range(16): g(f"v_mul_f32 v{o+r}, v{o+r}, {T2}")
            for e in range(2):
                d = F_ + 4 * ((2 * dt + e) % NF)
                rs = [o + 4*e, o + 4*e + 2, o + 8 + 4*e, o + 8 + 4*e + 2]
                for i, r in enumerate(rs): g(f"v_cvt_pk_bf16_f32 v{d+i}, v{r}, v{r+1}")
                g(f"buffer_store_dwordx4 {vr(d,4)}, {VOOFF}, {SRD_WS}, s53 offen offset:{512*e} sc1")
            g(f"s_add_u32 s53, s53, 6144")
        g(f"s_add_u32 s54, s54, {8*UNIT}")

def rare_path(g, lab):
    g(f"""
    {lab}:
    v_mov_b32 {T0}, {VMAX}
    v_mov_b32 {T1}, {VMAX}
    v_permlane32_swap_b32 {T0}, {T1}
    v_max3_f32 {T0}, {T0}, {T1}, {VM}
    v_sub_f32 {T1}, {VM}, {T0}
    v_mul_f32 {T1}, s46, {T1}
    v_exp_f32 {T1}, {T1}
    v_mov_b32 {VM}, {T0}
    v_mul_f32 {VMC}, s46, {T0}
    v_add_f32 {VTHR}, s47, {T0}
    v_mul_f32 {VL}, {VL}, {T1}
    """)
    for r in range(96): g(f"v_mul_f32 v{O_+r}, v{O_+r}, {T1}")
    g(f"s_branch {lab}_ret")

STAMPS = False
def stamp(g, role):
    if not STAMPS: return
    g(f"""
    s_memtime s[96:97]
    s_waitcnt lgkmcnt(0)
    v_mov_b32 v254, s96
    v_mov_b32 v253, s98
    s_mov_b64 exec, 1
    buffer_store_dword v254, v253, {SRD_WS}, 0 offen
    s_mov_b64 exec, -1
    s_add_u32 s98, s98, 4
    """)
def stamp_init(g):
    if not STAMPS: return
    g(f"""
    s_lshl_b32 s98, s2, 3
    s_add_u32 s98, s98, s3
    s_lshl_b32 s98, s98, 9
    s_add_u32 s98, s98, {TSOFF}
    """)

def attention(g, THR):
    g(f"""
    s_mov_b32 s46, {fbits(CSC)}
    s_mov_b32 s47, {fbits(THR / CSC)}
    s_mov_b32 s48, 0
    s_mul_i32 s52, s3, 12288
    s_add_u32 s52, s52, s45
    s_lshl_b32 s54, s42, 5
    s_add_u32 s54, s54, s39
    s_mul_i32 s54, s54, {UNIT}
    s_lshl_b32 s53, s3, 11
    s_add_u32 s54, s54, s53
    s_lshl_b32 s53, s42, 3
    v_mov_b32 {VFLAG}, s53
    v_lshlrev_b32 {VQOFF}, 4, {LANE}
    """)
    stamp_init(g)
    g(f"""
    v_and_b32 v1, 31, {LANE}
    v_lshrrev_b32 v2, 5, {LANE}
    v_mul_u32_u24 v3, 384, v1
    """)
    emit_f(g, "v4", "v1", "v5")
    for v in range(4):
        g(f"""
        v_add_u32 v5, {2*v}, v2
        v_xor_b32 v5, v5, v4
        v_lshl_add_u32 v{KB+v}, v5, 4, v3
        """)
    g(f"""
    v_lshrrev_b32 v5, 4, v1
    v_lshlrev_b32 v5, 10, v5
    v_and_b32 v6, 15, v1
    v_lshl_add_u32 v6, v2, 4, v6
    v_lshl_add_u32 {VOOFF}, v6, 4, v5
    """)
    g(f"""
    v_bfe_u32 v5, {LANE}, 4, 1
    v_bfe_u32 v6, {LANE}, 2, 2
    v_bfe_u32 v7, {LANE}, 1, 1
    v_and_b32 v8, 1, {LANE}
    v_lshl_add_u32 v9, v2, 2, v6
    v_mul_u32_u24 v9, 384, v9
    v_lshl_add_u32 v9, v8, 3, v9
    v_lshl_add_u32 v10, v5, 1, v7
    v_bfe_u32 v11, {LANE}, 3, 1
    v_lshl_add_u32 v11, v11, 2, v2
    """)
    for u in range(2):
        for e in range(2):
            g(f"""
            v_add_u32 v12, {4*e}, v10
            v_add_u32 v13, {2*u}, v11
            v_xor_b32 v12, v12, v13
            v_lshl_add_u32 v12, v12, 4, v9
            v_add_u32 v{VB + 2*u + e}, {12288 + 8*384*u}, v12
            """)
    zero_O(g)
    g(f"""
    s_mov_b32 s55, 0
    A_idle:
    s_barrier
    """)
    stamp(g, 0)
    g(f"""
    s_add_u32 s55, s55, 1
    s_cmp_lt_u32 s55, 10
    s_cbranch_scc1 A_idle
    """)
    b = G()
    b("s_barrier")
    stamp(b, 0)
    q_loads(b)
    tick_head(b)
    for j in range(LEAD):
        for r in frag_read(j): b(r)
    b("s_waitcnt vmcnt(0)")
    for j in range(12):
        b(mfma_att(j, S_[0]))
        if j + LEAD < 12:
            for r in frag_read(j + LEAD): b(r)
    for o in max_ops(S_[0]): b(o)
    g.ext(add_lgkm(b.L))
    m_init(g)
    rare = []
    g(f"""
    s_mov_b32 s56, 0
    s_mov_b32 s49, 0
    A_unit:
    s_mov_b32 s55, 0
    A_loop:
    """)
    att_tick(g, 0, "norm", rare)
    g(f"""
    s_cmp_eq_u32 s49, 0
    s_cbranch_scc1 A_nosig
    """)
    signal(g)
    g(f"""
    s_mov_b32 s49, 0
    A_nosig:
    """)
    att_tick(g, 1, "norm", rare)
    g(f"""
    s_add_u32 s55, s55, 1
    s_cmp_lt_u32 s55, 7
    s_cbranch_scc1 A_loop
    """)
    att_tick(g, 0, "t14", rare)
    att_tick(g, 1, "t15", rare)
    g(f"""
    s_lshl_b32 s49, s56, 3
    s_lshl_b32 s49, 1, s49
    s_add_u32 s56, s56, 1
    s_cmp_eq_u32 s56, 4
    s_cbranch_scc1 A_done
    """)
    zero_O(g)
    m_init(g)
    g("s_branch A_unit\nA_done:")
    signal(g)
    g("s_endpgm")
    for lab in rare: rare_path(g, lab)

LKV = 8; LWQ = 16; LX = 28; LWO = 32; LLIN = 52; LPOLL = 53; LPOFF = 54

def div3(g, dst, src):
    g(f"v_mul_u32_u24 {dst}, 171, {src}\nv_lshrrev_b32 {dst}, 9, {dst}")

def ld_qchunk(g):
    for hh in range(2):
        for i in range(12):
            if i % 4 == 0:
                g(f"s_add_u32 m0, s59, {hh*12288 + 4096*(i//4)}")
                if i == 0: g(f"s_add_u32 s53, s57, {hh*32*12288}")
            g(f"buffer_load_dwordx4 v{LWQ+i}, {SRD_WQ}, s53 offen offset:{1024*(i%4)} lds")
    for gi in range(3):
        g(f"s_add_u32 m0, s59, {24576 + 4096*gi}\ns_add_u32 s53, s58, {gi*40960}")
        for i in range(4):
            g(f"buffer_load_dwordx4 v{LX+i}, {SRD_X}, s53 offen offset:{1024*i} lds")

def ld_ochunk(g):
    for i in range(20):
        if i % 4 == 0: g(f"s_add_u32 m0, s59, {24576 + 1024*i}")
        g(f"buffer_load_dwordx4 v{LWO+i}, {SRD_WO}, s58 offen offset:{1024*(i%4)} lds")
    for i in range(24):
        if i % 4 == 0: g(f"s_add_u32 m0, s59, {1024*i}\ns_add_u32 s53, s57, {1024*i}")
        g(f"buffer_load_dwordx4 v{LLIN}, {SRD_WS}, s53 offen offset:{1024*(i%4)} sc1 lds")

def ld_block(g, srd, soff, ldsoff):
    for i in range(12):
        if i % 4 == 0: g(f"s_add_u32 m0, s48, {ldsoff + 1024*i}\ns_add_u32 s53, {soff}, {1024*i}")
        g(f"buffer_load_dwordx4 v{LKV + i % 6}, {srd}, s53 offen offset:{1024*(i%4)} nt lds")

def loader(g):
    g(f"""
    L_loader:
    s_setprio 3
    v_lshrrev_b32 v1, 3, {LANE}
    v_and_b32 v2, 7, {LANE}
    """)
    stamp_init(g)
    for i in range(12):
        g(f"v_add_u32 v3, {8*i}, v1")
        div3(g, "v4", "v3")
        g(f"""
        v_mul_u32_u24 v5, 3, v4
        v_sub_u32 v5, v3, v5
        v_lshlrev_b32 v5, 7, v5
        """)
        emit_f(g, "v6", "v4", "v7")
        g(f"""
        v_xor_b32 v6, v6, v2
        v_lshl_add_u32 v5, v6, 4, v5
        v_mul_u32_u24 v4, 12288, v4
        v_add_u32 v4, v4, v5
        v_subrev_u32 v{LWQ+i}, {1024*(i%4)}, v4
        """)
        if i < 6:
            g(f"""
            v_lshlrev_b32 v5, 7, v1
            v_lshl_add_u32 v{LKV+i}, v6, 4, v5
            """)
    for i in range(4):
        g(f"""
        v_add_u32 v3, {8*i}, v1
        v_bfe_u32 v4, v3, 1, 3
        v_xor_b32 v4, v4, v2
        v_mul_u32_u24 v3, 1280, v3
        v_lshl_add_u32 v3, v4, 4, v3
        v_subrev_u32 v{LX+i}, {1024*i}, v3
        """)
    g(f"""
    s_mul_i32 s57, s36, 384
    s_mul_i32 s58, s37, 122880
    s_mov_b32 s59, {PB0}
    """)
    ld_qchunk(g)
    for i in range(20):
        g(f"""
        v_add_u32 v3, {64*i}, {LANE}
        v_mul_u32_u24 v4, 6554, v3
        v_lshrrev_b32 v4, 16, v4
        v_mul_u32_u24 v5, 10, v4
        v_sub_u32 v5, v3, v5
        v_mul_u32_u24 v4, 1280, v4
        v_lshl_add_u32 v4, v5, 4, v4
        v_subrev_u32 v{LWO+i}, {1024*(i%4)}, v4
        """)
    g(f"""
    v_lshlrev_b32 v{LLIN}, 4, {LANE}
    s_lshl_b32 s53, s43, 3
    v_mov_b32 v{LPOFF}, s53
    s_mov_b32 s55, 0          ; T
    s_mov_b32 s56, 0
    s_mov_b32 s48, 0
    s_lshl_b32 s60, s37, 5
    s_add_u32 s60, s60, s36
    s_mul_i32 s60, s60, 196608
    s_mov_b32 s61, s60
    s_mov_b32 s62, 38
    s_mov_b32 s63, 0
    s_waitcnt vmcnt(0)
    LD_loop:
    s_barrier
    """)
    stamp(g, 1)
    g(f"""
    s_cmp_lg_u32 s55, s62
    s_cbranch_scc1 LD_nopoll
    buffer_load_dword v{LPOLL}, v{LPOFF}, {SRD_DBG}, 0 offen sc1
    LD_nopoll:
    s_xor_b32 s59, s59, {PB0 ^ (PB0 + PBSZ)}
    s_add_u32 s56, s56, 1
    s_cmp_ge_u32 s55, 39
    s_cbranch_scc1 LD_o
    s_add_u32 s57, s57, {64*12288}
    s_add_u32 s58, s58, 128
    s_cmp_lt_u32 s56, 10
    s_cbranch_scc1 LD_q1
    s_mov_b32 s56, 0
    s_add_u32 s57, s57, {768 - 640*12288 + (1 << 32)}
    s_sub_u32 s58, s58, 1280
    LD_q1:
    """)
    ld_qchunk(g)
    g(f"""
    s_branch LD_kv
    LD_o:
    s_cmp_ge_u32 s55, 87
    s_cbranch_scc1 LD_kv
    s_cmp_lg_u32 s55, 39
    s_cbranch_scc1 LD_o1
    s_mul_i32 s57, s43, {32*UNIT}
    s_mul_i32 s58, s44, 160
    s_mov_b32 s56, 0
    s_mov_b32 s46, 0
    s_branch LD_o2
    LD_o1:
    s_add_u32 s57, s57, 24576
    s_add_u32 s58, s58, {128*1280}
    s_add_u32 s46, s46, 1
    s_cmp_lt_u32 s46, 3
    s_cbranch_scc1 LD_o2
    s_mov_b32 s46, 0
    s_add_u32 s58, s58, {6*192*1280}
    s_cmp_lt_u32 s56, 12
    s_cbranch_scc1 LD_o2
    s_mov_b32 s56, 0
    s_sub_u32 s58, s58, {30*192*1280}
    LD_o2:
    """)
    ld_ochunk(g)
    g(f"""
    LD_kv:
    s_cmp_lt_u32 s55, 8
    s_cbranch_scc1 LD_w0
    s_cmp_gt_u32 s55, 72
    s_cbranch_scc1 LD_w0
    s_cmp_eq_u32 s55, 72
    s_cbranch_scc1 LD_v
    """)
    ld_block(g, SRD_K, "s60", 0)
    g(f"""
    s_add_u32 s60, s60, 12288
    s_and_b32 s53, s55, 15
    s_cmp_eq_u32 s53, 7
    s_cselect_b32 s53, 196608, 0
    s_add_u32 s60, s60, s53
    s_cmp_eq_u32 s55, 8
    s_cbranch_scc1 LD_w12
    LD_v:
    """)
    ld_block(g, SRD_V, "s61", 12288)
    g(f"""
    s_add_u32 s61, s61, 12288
    s_and_b32 s53, s55, 15
    s_cmp_eq_u32 s53, 8
    s_cselect_b32 s53, 196608, 0
    s_add_u32 s61, s61, s53
    s_cmp_eq_u32 s55, 72
    s_cbranch_scc1 LD_w12
    s_waitcnt vmcnt(24)
    s_branch LD_adv
    LD_w12:
    s_waitcnt vmcnt(12)
    LD_adv:
    s_add_u32 s48, s48, {KV_SLOT}
    s_cmp_eq_u32 s48, {3*KV_SLOT}
    s_cselect_b32 s48, 0, s48
    s_branch LD_chk
    LD_w0:
    s_waitcnt vmcnt(0)
    LD_chk:
    s_cmp_lg_u32 s55, s62
    s_cbranch_scc1 LD_next
    LD_spin:
    v_readfirstlane_b32 s53, v{LPOLL}
    s_lshr_b32 s53, s53, s63
    s_and_b32 s53, s53, 0xff
    s_cmp_ge_u32 s53, 24
    s_cbranch_scc1 LD_ok
    s_sleep 2
    buffer_load_dword v{LPOLL}, v{LPOFF}, {SRD_DBG}, 0 offen sc1
    s_waitcnt vmcnt(0)
    s_branch LD_spin
    LD_ok:
    s_add_u32 s62, s62, 12
    s_add_u32 s63, s63, 8
    s_cmp_eq_u32 s63, 32
    s_cselect_b32 s62, 1000, s62
    LD_next:
    s_add_u32 s55, s55, 1
    s_cmp_lt_u32 s55, 88
    s_cbranch_scc1 LD_loop
    s_endpgm
    """)

PA = 0
PF = 120
PW = 200
PX = 206
PO = 208; PWO = 209; PQS = 210; PT = 211

def proj(g):
    g(f"""
    L_proj:
    s_sub_u32 s46, s3, 4
    v_lshrrev_b32 v1, 4, {LANE}
    v_bfe_u32 v2, {LANE}, 2, 2
    v_bfe_u32 v3, {LANE}, 1, 1
    v_and_b32 v4, 1, {LANE}
    v_and_b32 v5, 15, {LANE}
    v_lshl_add_u32 v6, v1, 3, v2
    v_mul_u32_u24 v6, 384, v6
    v_lshl_add_u32 v6, v4, 3, v6
    v_bfe_u32 v7, {LANE}, 3, 1
    v_lshlrev_b32 v7, 2, v7
    v_and_b32 v8, 1, v1
    v_lshl_add_u32 v7, v8, 1, v7
    s_mul_i32 s47, s46, 3
    """)
    stamp_init(g)
    for dt in range(3):
        g(f"""
        s_add_u32 s48, s47, {dt}
        s_and_b32 s49, s48, 3
        s_lshl_b32 s49, s49, 1
        s_lshr_b32 s48, s48, 2
        s_lshl_b32 s48, s48, 7
        s_add_u32 s48, s48, {PB0}
        """)
        for u in range(2):
            g(f"""
            v_add_u32 v9, s49, v3
            v_add_u32 v10, {u}, v7
            v_xor_b32 v9, v9, v10
            v_lshl_add_u32 v9, v9, 4, v6
            v_add_u32 v9, {4*384*u}, v9
            v_add_u32 v{PW + 2*dt + u}, s48, v9
            """)
    for s in range(2):
        g(f"""
        v_add_u32 v9, {4*s}, v1
        v_lshrrev_b32 v10, 1, v5
        v_xor_b32 v9, v9, v10
        v_lshlrev_b32 v10, 7, v5
        v_lshl_add_u32 v9, v9, 4, v10
        v_add_u32 v{PX+s}, {PB0 + 24576}, v9
        """)
    g(f"""
    s_mul_i32 s48, s46, 6144
    s_add_u32 s48, s48, {PB0}
    v_lshlrev_b32 v9, 4, {LANE}
    v_add_u32 v{PO}, s48, v9
    s_mul_i32 s48, s46, 5120
    s_add_u32 s48, s48, {PB0 + 24576}
    v_lshl_add_u32 v9, v1, 2, v2
    v_mul_u32_u24 v9, 160, v9
    v_and_b32 v10, 3, {LANE}
    v_lshl_add_u32 v9, v10, 3, v9
    v_add_u32 v{PWO}, s48, v9
    v_lshrrev_b32 v9, 1, v1
    v_lshl_add_u32 v9, v9, 5, v5
    v_lshlrev_b32 v9, 4, v9
    v_lshl_add_u32 v9, v8, 3, v9
    s_mul_i32 s48, s46, 3072
    v_add_u32 v{PQS}, s48, v9
    s_mov_b32 s52, s45
    s_mov_b32 s54, {PBSZ}
    s_mov_b32 s56, 0
    """)
    addrs = list(range(PW, PW + 6)) + [PX, PX + 1, PO, PWO]
    def toggle(g, regs):
        for r in regs: g(f"v_add_u32 v{r}, s54, v{r}")
        g("s_sub_u32 s54, 0, s54")
    g("P_job:")
    for r in range(72): g(f"v_mov_b32 v{PA+r}, 0")
    g("s_mov_b32 s55, 0\nP_qloop:")
    b = G()
    b("s_barrier")
    stamp(b, 2)
    def qreads(ks):
        fa = PF + 36 * ks
        rd = []
        for dt in range(3):
            for u in range(2):
                rd.append(f"ds_read_b64_tr_b16 {vr(fa + 4*dt + 2*u, 2)}, v{PW + 2*dt + u} offset:{12288*ks}")
        xs = [f"ds_read_b128 {vr(fa + 12 + 4*qt, 4)}, v{PX + ks} offset:{2048*qt}" for qt in range(6)]
        return rd[:2] + xs[:1] + rd[2:] + xs[1:]
    for r in qreads(0): b(r)
    r1 = qreads(1)
    for ks in range(2):
        fa = PF + 36 * ks
        for qt in range(6):
            for dt in range(3):
                acc = PA + 4 * (dt * 6 + qt)
                b(f"v_mfma_f32_16x16x32_bf16 {vr(acc,4)}, {vr(fa+4*dt,4)}, {vr(fa+12+4*qt,4)}, {vr(acc,4)}")
                if ks == 0 and r1: b(r1.pop(0))
    toggle(b, addrs[:8])
    g.ext(add_lgkm(b.L))
    g(f"""
    s_add_u32 s55, s55, 1
    s_cmp_lt_u32 s55, 10
    s_cbranch_scc1 P_qloop
    """)
    for qt in range(6):
        if qt % 2 == 0: g(f"s_add_u32 s53, s52, {(qt>>1)*12288}")
        for dt in range(3):
            acc = PA + 4 * (dt * 6 + qt)
            d = PF + 2 * (qt * 3 + dt)
            g(f"""
            v_cvt_pk_bf16_f32 v{d}, v{acc}, v{acc+1}
            v_cvt_pk_bf16_f32 v{d+1}, v{acc+2}, v{acc+3}
            buffer_store_dwordx2 {vr(d,2)}, v{PQS}, {SRD_WS}, s53 offen offset:{dt*1024 + (qt&1)*256}
            """)
    g(f"""
    s_add_u32 s52, s52, {UNIT}
    s_waitcnt vmcnt(0)
    s_add_u32 s56, s56, 1
    s_cmp_lt_u32 s56, 4
    s_cbranch_scc1 P_job
    """)
    for r in range(120): g(f"v_mov_b32 v{PA+r}, 0")
    g("s_mov_b32 s55, 0\nP_oloop:")
    b = G()
    b("s_barrier")
    stamp(b, 2)
    fa = PF
    wr = []
    for nt in range(5):
        wr.append([f"ds_read_b64_tr_b16 {vr(fa + 4*nt + 2*u, 2)}, v{PWO} offset:{2560*u + 32*nt}" for u in range(2)])
    orr = [f"ds_read_b128 {vr(fa + 20 + 4*qt, 4)}, v{PO} offset:{1024*qt}" for qt in range(6)]
    seq = wr[0] + [orr[0]] + wr[1] + wr[2] + wr[3] + wr[4] + orr[1:4]
    for r in seq: b(r)
    rest = orr[4:]
    for qt in range(6):
        for nt in range(5):
            acc = PA + 4 * (qt * 5 + nt)
            b(f"v_mfma_f32_16x16x32_bf16 {vr(acc,4)}, {vr(fa+4*nt,4)}, {vr(fa+20+4*qt,4)}, {vr(acc,4)}")
            if rest: b(rest.pop(0))
    toggle(b, addrs[8:])
    g.ext(add_lgkm(b.L))
    g(f"""
    s_add_u32 s55, s55, 1
    s_cmp_lt_u32 s55, 48
    s_cbranch_scc1 P_oloop
    s_barrier
    """)
    stamp(g, 2)
    g(f"""
    s_mul_i32 s48, s46, 30720
    v_lshlrev_b32 v{PT}, 4, {LANE}
    v_add_u32 v{PT+1}, s48, v{PT}
    """)
    for t in range(30):
        g(f"ds_write_b128 v{PT+1}, {vr(PA+4*t,4)} offset:{1024*t}")
        if t % 8 == 7: g("s_waitcnt lgkmcnt(4)")
    g(f"""
    v_and_b32 v{PT+2}, 15, {LANE}
    v_mul_u32_u24 v{PT+2}, 2560, v{PT+2}
    v_lshrrev_b32 v{PT+3}, 4, {LANE}
    v_lshl_add_u32 v{PT+2}, v{PT+3}, 3, v{PT+2}
    s_and_b32 s48, s43, 15
    s_mul_i32 s48, s48, {96*2560}
    s_mul_i32 s49, s38, 1280
    s_add_u32 s48, s48, s49
    s_mul_i32 s49, s44, 160
    s_add_u32 s48, s48, s49
    s_lshl_b32 s49, s46, 10
    v_add_u32 v{PT}, s49, v{PT}
    v_add_u32 v{PT+1}, {2*30720}, v{PT}
    s_waitcnt lgkmcnt(0)
    s_barrier
    s_mov_b32 s55, s46
    P_red:
    ds_read_b128 v[0:3], v{PT}
    ds_read_b128 v[4:7], v{PT} offset:30720
    ds_read_b128 v[8:11], v{PT+1}
    ds_read_b128 v[12:15], v{PT+1} offset:30720
    s_mul_i32 s49, s55, 52
    s_lshr_b32 s49, s49, 8
    s_mul_i32 s53, s49, 5
    s_sub_u32 s53, s55, s53
    s_mul_i32 s49, s49, {16*2560}
    s_lshl_b32 s53, s53, 5
    s_add_u32 s53, s53, s49
    s_add_u32 s53, s53, s48
    v_add_u32 v{PT}, 4096, v{PT}
    v_add_u32 v{PT+1}, 4096, v{PT+1}
    s_waitcnt lgkmcnt(0)
    """)
    for i in range(4): g(f"v_add_f32 v{i}, v{i}, v{4+i}\nv_add_f32 v{8+i}, v{8+i}, v{12+i}")
    for i in range(4): g(f"v_add_f32 v{i}, v{i}, v{8+i}")
    g(f"""
    v_cvt_pk_bf16_f32 v16, v0, v1
    v_cvt_pk_bf16_f32 v17, v2, v3
    buffer_store_dwordx2 v[16:17], v{PT+2}, {SRD_OUT}, s53 offen
    s_add_u32 s55, s55, 4
    s_cmp_lt_u32 s55, 30
    s_cbranch_scc1 P_red
    """)
    stamp(g, 2)
    g("s_endpgm")

def build(thr=8.0):
    g = G()
    common(g)
    attention(g, thr)
    loader(g)
    proj(g)
    g("L_end:\ns_endpgm")
    lines, n = fix_hazards(g.L, verbose="-v" in sys.argv)
    print("nop states inserted:", n, " lines:", len(lines), file=sys.stderr)
    return wrap(["@launch grid=(256,1,1) block=(512,1,1) lds=163840"], [(NAME + "_kernel", "\n".join(lines) + "\n", 256, 102, 256)])

if __name__ == "__main__":
    out = sys.argv[1]
    if "--stamps" in sys.argv: STAMPS = True
    thr = 8.0
    for a in sys.argv:
        if a.startswith("--thr="): thr = float(a[6:])
    open(out, "w").write(build(thr))
```

```python
import sys, math, struct
from asmlib import *
from isa import *

KV_SLOT = 24576
PB0 = 73728
PBSZ = 45056
UNIT = 36864
QOFF = 32 * 4 * 8 * UNIT
TSOFF = QOFF + 256 * 5 * UNIT
WS_BYTES = 438042624
FLOFF = QOFF
CSC = (192 ** -0.5) * math.log2(math.e)
def fbits(x): return "0x%08x" % struct.unpack("<I", struct.pack("<f", x))[0]

SRD_K, SRD_V, SRD_WQ, SRD_WO, SRD_X, SRD_WS, SRD_OUT, SRD_DBG = [f"s[{4*i+4}:{4*i+7}]" for i in range(8)]
LANE = "v255"

class G:
    def __init__(self): self.L = []
    def __call__(self, s):
        for l in s.strip("\n").split("\n"):
            l = l.strip()
            if not l: continue
            self.L.append(l if l.endswith(":") else "    " + l)
    def ext(self, lines): self.L += lines

def vr(b, n=1): return f"v{b}" if n == 1 else f"v[{b}:{b+n-1}]"

def emit_f(g, dst, row, tmp):
    g(f"""
    v_lshlrev_b32 {tmp}, 1, {row}
    v_and_b32 {tmp}, 4, {tmp}
    v_bfe_u32 {dst}, {row}, 2, 2
    v_or_b32 {dst}, {dst}, {tmp}
    """)

def common(g):
    g(f"""
    s_cmp_ge_u32 s2, 256
    s_cbranch_scc1 L_end
    s_load_dwordx16 s[64:79], s[0:1], 0
    s_load_dwordx8 s[80:87], s[0:1], 64
    s_load_dwordx2 s[88:89], s[0:1], 96
    v_lshrrev_b32 v1, 6, v0
    v_and_b32 {LANE}, 63, v0
    s_and_b32 s40, s2, 7
    v_readfirstlane_b32 s3, v1
    s_lshr_b32 s41, s2, 3
    s_lshr_b32 s38, s40, 2
    s_and_b32 s50, s40, 3
    s_lshr_b32 s51, s41, 4
    s_lshl_b32 s36, s50, 3
    s_add_u32 s36, s36, s51
    s_and_b32 s37, s41, 15
    s_lshl_b32 s39, s50, 1
    s_add_u32 s39, s39, s51
    s_lshl_b32 s42, s38, 4
    s_add_u32 s42, s42, s37
    s_lshl_b32 s43, s40, 2
    s_lshr_b32 s51, s41, 3
    s_add_u32 s43, s43, s51
    s_and_b32 s44, s41, 7
    s_mul_i32 s45, s2, {4*UNIT}
    s_add_u32 s45, s45, {QOFF}
    s_mov_b32 s6, {16*32*196608}
    s_mov_b32 s7, 0x20000
    s_mov_b32 s10, {16*32*196608}
    s_mov_b32 s11, 0x20000
    s_mov_b32 s14, {640*6144*2}
    s_mov_b32 s15, 0x20000
    s_mov_b32 s18, {640*6144*2}
    s_mov_b32 s19, 0x20000
    s_mov_b32 s22, {16*96*640*2}
    s_mov_b32 s23, 0x20000
    s_mov_b32 s26, {WS_BYTES}
    s_mov_b32 s27, 0x20000
    s_mov_b32 s30, {16*96*1280*2}
    s_mov_b32 s31, 0x20000
    s_mov_b32 s34, 256
    s_mov_b32 s35, 0x20000
    s_waitcnt lgkmcnt(0)
    s_cmp_eq_u32 s38, 0
    s_cselect_b32 s20, s64, s74
    s_cselect_b32 s21, s65, s75
    s_cselect_b32 s4, s66, s76
    s_cselect_b32 s5, s67, s77
    s_cselect_b32 s8, s68, s78
    s_cselect_b32 s9, s69, s79
    s_cselect_b32 s12, s70, s80
    s_cselect_b32 s13, s71, s81
    s_cselect_b32 s16, s72, s82
    s_cselect_b32 s17, s73, s83
    s_mov_b32 s28, s84
    s_mov_b32 s29, s85
    s_mov_b32 s32, s86
    s_mov_b32 s33, s87
    s_mov_b32 s24, s88
    s_mov_b32 s25, s89
    s_cmp_eq_u32 s3, 3
    s_cbranch_scc1 L_loader
    s_cmp_ge_u32 s3, 4
    s_cbranch_scc1 L_proj
    """)

O_ = 0; Q_ = 96; S_ = (144, 160); P_ = 176; F_ = 184; NF = 8
KB = 216; VB = 220; KC = 224; VC = 228
VM, VMC, VTHR, VL, VMAX, T0, T1, T2, VQOFF, VOOFF, VFLAG = [f"v{i}" for i in range(232, 243)]
LEAD = 6

def frag_read(j):
    b = F_ + 4 * (j % NF)
    if j < 12:
        return [f"ds_read_b128 {vr(b,4)}, v{KC + (j & 3)} offset:{128 * (j >> 2)}"]
    jj = j - 12; t = jj // 6; dt = jj % 6
    off = 16 * 384 * t + 128 * (dt >> 1)
    return [f"ds_read_b64_tr_b16 {vr(b + 2*u, 2)}, v{VC + 2*u + (dt & 1)} offset:{off}" for u in range(2)]

def mfma_att(j, snxt):
    b = F_ + 4 * (j % NF)
    if j < 12:
        c = "0" if j == 0 else vr(snxt, 16)
        return f"v_mfma_f32_32x32x16_bf16 {vr(snxt,16)}, {vr(b,4)}, {vr(Q_+4*j,4)}, {c}"
    jj = j - 12; t = jj // 6; dt = jj % 6
    return f"v_mfma_f32_32x32x16_bf16 {vr(O_+16*dt,16)}, {vr(b,4)}, {vr(P_+4*t,4)}, {vr(O_+16*dt,16)}"

def softmax_ops(s):
    ops = []
    fma = lambda e: f"v_fma_f32 v{s+e}, v{s+e}, s46, -{VMC}"
    ex = lambda e: f"v_exp_f32 v{s+e}, v{s+e}"
    add = lambda e: f"v_add_f32 {VL}, {VL}, v{s+e}"
    cvt = lambda i: f"v_cvt_pk_bf16_f32 v{P_+i}, v{s+2*i}, v{s+2*i+1}"
    for k in range(19):
        if k < 16: ops.append(fma(k))
        if 0 <= k - 1 < 16: ops.append(ex(k - 1))
        if 0 <= k - 3 < 16:
            ops.append(add(k - 3))
            if (k - 3) & 1: ops.append(cvt((k - 3) >> 1))
    return ops

def max_ops(s):
    ops = [f"v_max3_f32 {VMAX}, v{s}, v{s+1}, v{s+2}"]
    for k in range(6): ops.append(f"v_max3_f32 {VMAX}, {VMAX}, v{s+3+2*k}, v{s+4+2*k}")
    ops.append(f"v_max_f32 {VMAX}, {VMAX}, v{s+15}")
    return ops

def tick_head(g):
    for i in range(4): g(f"v_add_u32 v{KC+i}, s48, v{KB+i}")
    for i in range(4): g(f"v_add_u32 v{VC+i}, s48, v{VB+i}")
    g(f"""
    s_add_u32 s48, s48, {KV_SLOT}
    s_cmp_eq_u32 s48, {3*KV_SLOT}
    s_cselect_b32 s48, 0, s48
    """)

def q_reads():
    return [f"ds_read_b128 {vr(Q_+4*s,4)}, {VQOFF} offset:{1024*s}" for s in range(12)]

def m_init(g):
    g(f"""
    v_mov_b32 {T0}, {VMAX}
    v_mov_b32 {T1}, {VMAX}
    v_permlane32_swap_b32 {T0}, {T1}
    v_max_f32 {VM}, {T0}, {T1}
    v_mul_f32 {VMC}, s46, {VM}
    v_add_f32 {VTHR}, s47, {VM}
    v_mov_b32 {VL}, 0
    """)

def zero_O(g):
    for i in range(4): g(f"v_mov_b32 v{P_+i}, 0")
    for dt in range(6):
        g(f"v_mfma_f32_32x32x16_bf16 {vr(O_+16*dt,16)}, {vr(P_,4)}, {vr(P_,4)}, 0")

def signal(g):
    g(f"""
    s_waitcnt vmcnt(0)
    v_mov_b32 {T0}, s49
    s_mov_b64 exec, 1
    buffer_atomic_add {T0}, {VFLAG}, {SRD_DBG}, 0 offen
    s_mov_b64 exec, -1
    """)

def att_tick(g, par, mode, rare):
    scur, snxt = S_[par], S_[par ^ 1]
    b = G()
    bar(g)
    tick_head(b)
    qr = q_reads() if mode == "t15" else []
    for j in range(LEAD):
        for r in frag_read(j): b(r)
        if qr: b(qr.pop(0))
    sm = softmax_ops(scur)
    mx = max_ops(snxt) + [f"v_cmp_gt_f32 vcc, {VMAX}, {VTHR}"]
    pre = 10
    for o in sm[:pre]: b(o)
    sm = sm[pre:]
    for j in range(24):
        b(mfma_att(j, snxt))
        if j + LEAD < 24:
            for r in frag_read(j + LEAD): b(r)
        if qr: b(qr.pop(0))
        if j < 12:
            n = 4
            for o in sm[:n]: b(o)
            sm = sm[n:]
        elif j >= 15:
            for o in mx[:2]: b(o)
            mx = mx[2:]
    assert not sm and not mx
    g.ext(add_lgkm(b.L))
    if mode != "t15":
        lab = f"A_rare{len(rare)}"
        g(f"s_cbranch_vccnz {lab}\n{lab}_ret:")
        rare.append(lab)
    else:
        g(f"""
        v_mov_b32 {T0}, {VL}
        v_mov_b32 {T1}, {VL}
        v_permlane32_swap_b32 {T0}, {T1}
        v_add_f32 {T0}, {T0}, {T1}
        v_rcp_f32 {T2}, {T0}
        s_mov_b32 s53, s54
        """)
        for dt in range(6):
            o = O_ + 16 * dt
            for r in range(16): g(f"v_mul_f32 v{o+r}, v{o+r}, {T2}")
            for e in range(2):
                d = F_ + 4 * ((2 * dt + e) % NF)
                rs = [o + 4*e, o + 4*e + 2, o + 8 + 4*e, o + 8 + 4*e + 2]
                for i, r in enumerate(rs): g(f"v_cvt_pk_bf16_f32 v{d+i}, v{r}, v{r+1}")
                g(f"buffer_store_dwordx4 {vr(d,4)}, {VOOFF}, {SRD_WS}, s53 offen offset:{512*e} {OPT['ost']}")
            g(f"s_add_u32 s53, s53, 6144")
        g(f"s_add_u32 s54, s54, {8*UNIT}")

def rare_path(g, lab):
    g(f"""
    {lab}:
    v_mov_b32 {T0}, {VMAX}
    v_mov_b32 {T1}, {VMAX}
    v_permlane32_swap_b32 {T0}, {T1}
    v_max3_f32 {T0}, {T0}, {T1}, {VM}
    v_sub_f32 {T1}, {VM}, {T0}
    v_mul_f32 {T1}, s46, {T1}
    v_exp_f32 {T1}, {T1}
    v_mov_b32 {VM}, {T0}
    v_mul_f32 {VMC}, s46, {T0}
    v_add_f32 {VTHR}, s47, {T0}
    v_mul_f32 {VL}, {VL}, {T1}
    """)
    for r in range(96): g(f"v_mul_f32 v{O_+r}, v{O_+r}, {T1}")
    g(f"s_branch {lab}_ret")

STAMPS = False
OPT = dict(ost='sc1', D=3, DO=0, tp='', notouch=0, fix=0, slp=8, fine=1, tw=1, to=1, top='', tol=0, slow=1, old='sc1', DW=3)
_sl = [0]
def stamp(g):
    if not STAMPS: return
    _sl[0] += 1
    n = _sl[0]
    g(f"""
    s_memtime s[96:97]
    s_waitcnt lgkmcnt(0)
    s_lshl_b64 exec, 1, s98
    s_cmp_ge_u32 s98, 64
    s_cbranch_scc1 ST_hi{n}
    v_mov_b32 v253, s96
    s_branch ST_e{n}
    ST_hi{n}:
    v_mov_b32 v254, s96
    ST_e{n}:
    s_mov_b64 exec, -1
    s_add_u32 s98, s98, 1
    """)
def fstamp(g, k):
    if not STAMPS or not OPT['fine']: return
    _sl[0] += 1
    n = _sl[0]
    g(f"""
    s_memtime s[96:97]
    s_waitcnt lgkmcnt(0)
    s_lshl_b64 exec, 1, s55
    s_cmp_ge_u32 s55, 64
    s_cbranch_scc1 ST_hi{n}
    v_mov_b32 v{240+2*k}, s96
    s_branch ST_e{n}
    ST_hi{n}:
    v_mov_b32 v{241+2*k}, s96
    ST_e{n}:
    s_mov_b64 exec, -1
    """)
def ffin(g):
    if not STAMPS: return
    g(f"""
    s_mul_i32 s95, s2, 1536
    s_add_u32 s95, s95, {TSOFF + 1048576}
    v_lshlrev_b32 v252, 2, {LANE}
    """)
    for k in range(6):
        g(f"buffer_store_dword v{240+k}, v252, {SRD_WS}, s95 offen offset:{256*k}")
def bar(g):
    stamp(g)
    g("s_barrier")
def stamp_init(g):
    if not STAMPS: return
    g("s_mov_b32 s98, 0\ns_memrealtime s[100:101]\ns_memtime s[96:97]\ns_waitcnt lgkmcnt(0)\ns_mov_b32 s99, s96")
def fin(g):
    if STAMPS:
        stamp(g)
        g(f"""
        s_memrealtime s[96:97]
        s_waitcnt lgkmcnt(0)
        v_writelane_b32 v254, s96, 63
        v_writelane_b32 v254, s100, 62
        v_writelane_b32 v254, s99, 61
        s_lshl_b32 s98, s2, 3
        s_add_u32 s98, s98, s3
        s_lshl_b32 s98, s98, 9
        s_add_u32 s98, s98, {TSOFF}
        v_lshlrev_b32 v252, 2, {LANE}
        buffer_store_dword v253, v252, {SRD_WS}, s98 offen
        buffer_store_dword v254, v252, {SRD_WS}, s98 offen offset:256
        """)
    g("s_endpgm")

def attention(g, THR):
    g(f"""
    s_lshl_b32 s53, s3, 6
    v_add_u32 v1, s53, {LANE}
    v_min_u32 v1, 119, v1
    v_mul_u32_u24 v2, 171, v1
    v_lshrrev_b32 v2, 9, v2
    v_mul_u32_u24 v3, 3, v2
    v_sub_u32 v3, v1, v3
    v_lshrrev_b32 v4, 2, v2
    v_and_b32 v2, 3, v2
    v_lshl_add_u32 v2, v4, 6, v2
    s_lshl_b32 s53, s37, 2
    v_add_u32 v2, s53, v2
    v_mul_u32_u24 v2, 12288, v2
    v_lshl_add_u32 v2, v3, 7, v2
    s_mul_i32 s53, s36, 384
    buffer_load_dword v4, v2, {SRD_WQ}, s53 offen {OPT['tp']}
    s_mov_b32 s55, s53
    s_lshr_b32 s53, s41, 4
    s_mul_i32 s53, s53, 48
    v_min_u32 v1, 47, {LANE}
    v_add_u32 v1, s53, v1
    v_mul_u32_u24 v1, 1280, v1
    s_mul_i32 s53, s37, 122880
    s_lshl_b32 s52, s3, 7
    s_add_u32 s53, s53, s52
    buffer_load_dword v4, v1, {SRD_X}, s53 offen {OPT['tp']}
    buffer_load_dword v4, v1, {SRD_X}, s53 offen offset:384 {OPT['tp']}
    buffer_load_dword v4, v1, {SRD_X}, s53 offen offset:768 {OPT['tp']}
    s_cmp_lg_u32 s3, 0
    s_cbranch_scc1 A_t1
    buffer_load_dword v4, v1, {SRD_X}, s53 offen offset:1152 {OPT['tp']}
    A_t1:
    buffer_load_dword v4, v2, {SRD_WQ}, s55 offen offset:768 {OPT['tp']}
    s_cmp_lg_u32 s3, 2
    s_cbranch_scc1 A_t2
    s_lshl_b32 s53, s43, 3
    s_add_u32 s53, s53, s44
    s_lshl_b32 s52, s53, 9
    s_add_u32 s52, s52, {FLOFF}
    v_mov_b32 v6, 0
    v_mov_b32 v7, 0
    v_lshlrev_b32 v5, 3, {LANE}
    buffer_store_dwordx2 v[6:7], v5, {SRD_WS}, s52 offen sc1
    v_mov_b32 v8, 1
    s_waitcnt vmcnt(0)
    s_mov_b64 exec, 1
    buffer_store_byte v8, v6, {SRD_DBG}, s53 offen sc1
    s_mov_b64 exec, -1
    A_t2:
    s_waitcnt vmcnt(0)
    """)
    g(f"""
    s_mov_b32 s46, {fbits(CSC)}
    s_mov_b32 s47, {fbits(THR / CSC)}
    s_mov_b32 s48, 0
    s_mul_i32 s52, s3, 12288
    s_add_u32 s52, s52, {PB0}
    s_lshl_b32 s54, s42, 5
    s_add_u32 s54, s54, s39
    s_mul_i32 s54, s54, {UNIT}
    s_lshl_b32 s53, s3, 11
    s_add_u32 s54, s54, s53
    v_lshlrev_b32 {VQOFF}, 4, {LANE}
    v_add_u32 {VQOFF}, s52, {VQOFF}
    """)
    stamp_init(g)
    g(f"""
    v_and_b32 v1, 31, {LANE}
    v_lshrrev_b32 v2, 5, {LANE}
    v_mul_u32_u24 v3, 384, v1
    """)
    emit_f(g, "v4", "v1", "v5")
    for v in range(4):
        g(f"""
        v_add_u32 v5, {2*v}, v2
        v_xor_b32 v5, v5, v4
        v_lshl_add_u32 v{KB+v}, v5, 4, v3
        """)
    g(f"""
    v_lshrrev_b32 v5, 4, v1
    v_lshlrev_b32 v5, 10, v5
    v_and_b32 v6, 15, v1
    v_lshl_add_u32 v6, v2, 4, v6
    v_lshl_add_u32 {VOOFF}, v6, 4, v5
    """)
    g(f"""
    v_bfe_u32 v5, {LANE}, 4, 1
    v_bfe_u32 v6, {LANE}, 2, 2
    v_bfe_u32 v7, {LANE}, 1, 1
    v_and_b32 v8, 1, {LANE}
    v_lshl_add_u32 v9, v2, 2, v6
    v_mul_u32_u24 v9, 384, v9
    v_lshl_add_u32 v9, v8, 3, v9
    v_lshl_add_u32 v10, v5, 1, v7
    v_bfe_u32 v11, {LANE}, 3, 1
    v_lshl_add_u32 v11, v11, 2, v2
    """)
    for u in range(2):
        for e in range(2):
            g(f"""
            v_add_u32 v12, {4*e}, v10
            v_add_u32 v13, {2*u}, v11
            v_xor_b32 v12, v12, v13
            v_lshl_add_u32 v12, v12, 4, v9
            v_add_u32 v{VB + 2*u + e}, {12288 + 8*384*u}, v12
            """)
    zero_O(g)
    g(f"""
    s_mov_b32 s55, 0
    A_idle:
    """)
    bar(g)
    g(f"""
    s_add_u32 s55, s55, 1
    s_cmp_lt_u32 s55, 10
    s_cbranch_scc1 A_idle
    """)
    b = G()
    bar(g)
    tick_head(b)
    qr = q_reads()
    for j in range(LEAD):
        for r in frag_read(j): b(r)
        b(qr.pop(0))
    for j in range(12):
        b(mfma_att(j, S_[0]))
        if j + LEAD < 12:
            for r in frag_read(j + LEAD): b(r)
            b(qr.pop(0))
    for o in max_ops(S_[0]): b(o)
    g.ext(add_lgkm(b.L))
    m_init(g)
    rare = []
    g(f"""
    s_mov_b32 s56, 0
    s_mov_b32 s49, 0
    A_unit:
    s_mov_b32 s55, 0
    A_loop:
    """)
    att_tick(g, 0, "norm", rare)
    g("s_waitcnt vmcnt(0)")
    att_tick(g, 1, "norm", rare)
    g(f"""
    s_add_u32 s55, s55, 1
    s_cmp_lt_u32 s55, 7
    s_cbranch_scc1 A_loop
    """)
    att_tick(g, 0, "t14", rare)
    att_tick(g, 1, "t15", rare)
    g(f"""
    s_add_u32 s56, s56, 1
    s_cmp_eq_u32 s56, 4
    s_cbranch_scc1 A_done
    """)
    zero_O(g)
    m_init(g)
    g("s_branch A_unit\nA_done:")
    g("s_waitcnt vmcnt(0)")
    bar(g)
    fin(g)
    for lab in rare: rare_path(g, lab)

LKV = 8; LWQ = 16; LX = 28; LWO = 32; LLIN = 52; LPOLL = 53; LPOFF = 54

def div3(g, dst, src):
    g(f"v_mul_u32_u24 {dst}, 171, {src}\nv_lshrrev_b32 {dst}, 9, {dst}")

def ld_qchunk(g):
    for hh in range(2):
        for i in range(12):
            if i % 4 == 0:
                g(f"s_add_u32 m0, s59, {hh*12288 + 4096*(i//4)}")
                if i == 0: g(f"s_add_u32 s53, s57, {hh*32*12288}")
            g(f"buffer_load_dwordx4 v{LWQ+i}, {SRD_WQ}, s53 offen offset:{1024*(i%4)} lds")
    for gi in range(3):
        g(f"s_add_u32 m0, s59, {24576 + 4096*gi}\ns_add_u32 s53, s58, {gi*40960}")
        for i in range(4):
            g(f"buffer_load_dwordx4 v{LX+i}, {SRD_X}, s53 offen offset:{1024*i} lds")

def ld_ochunk(g):
    for i in range(20):
        if i % 4 == 0: g(f"s_add_u32 m0, s59, {24576 + 1024*i}")
        g(f"buffer_load_dwordx4 v{LWO+i}, {SRD_WO}, s58 offen offset:{1024*(i%4)} lds")
    for i in range(24):
        if i % 4 == 0: g(f"s_add_u32 m0, s59, {1024*i}\ns_add_u32 s53, s57, {1024*i}")
        g(f"buffer_load_dwordx4 v{LLIN}, {SRD_WS}, s53 offen offset:{1024*(i%4)} {OPT['old']} lds")

def ld_block(g, srd, soff, ldsoff):
    for i in range(12):
        if i % 4 == 0: g(f"s_add_u32 m0, s48, {ldsoff + 1024*i}\ns_add_u32 s53, {soff}, {1024*i}")
        g(f"buffer_load_dwordx4 v{LKV + i % 6}, {srd}, s53 offen offset:{1024*(i%4)} nt lds")

def q_off(g, j, dst, dstx=None, fix=0):
    g(f"""
    s_mul_i32 s53, {j}, 26
    s_lshr_b32 s53, s53, 8
    s_mul_i32 s47, s53, 10
    s_sub_u32 s47, {j}, s47
    s_lshl_b32 s53, s53, 1
    s_mul_i32 s53, s53, {0 if fix else 1}
    s_add_u32 s53, s53, s36
    s_mul_i32 s53, s53, 384
    s_mul_i32 {dst}, s47, {64*12288}
    s_add_u32 {dst}, {dst}, s53
    """)
    if dstx:
        g(f"""
        s_lshl_b32 s47, s47, 7
        s_add_u32 {dstx}, s47, s90
        """)

def o_off(g, j, dst, dsto=None, fix=0):
    g(f"""
    s_sub_u32 s46, {j}, 40
    s_and_b32 s46, s46, {1 if fix else 63}
    s_mul_i32 s53, s46, 86
    s_lshr_b32 s53, s53, 8
    s_mul_i32 s47, s53, 3
    s_sub_u32 s47, s46, s47
    s_mul_i32 {dst}, s47, {128*1280}
    s_and_b32 s47, s53, 3
    s_lshl_b32 s47, s47, 3
    s_lshr_b32 s53, s53, 2
    s_lshl_b32 s53, s53, 1
    s_add_u32 s53, s53, s47
    s_mul_i32 s53, s53, {192*1280}
    s_add_u32 {dst}, {dst}, s53
    """)
    if dsto:
        g(f"""
        s_mul_i32 {dsto}, s46, 24576
        s_add_u32 {dsto}, {dsto}, s91
        """)

LTQ = 55; LTW = 56; LTO = 57; LDUM = 58; LTX = 59; LSQ = 60; LSW = 62; LSIG = 64; LONE = 65; LRDY = 66

def loader(g):
    D = OPT['D']
    g(f"""
    L_loader:
    s_setprio 3
    v_lshrrev_b32 v1, 3, {LANE}
    v_and_b32 v2, 7, {LANE}
    """)
    stamp_init(g)
    for i in range(12):
        g(f"v_add_u32 v3, {8*i}, v1")
        div3(g, "v4", "v3")
        g(f"""
        v_mul_u32_u24 v5, 3, v4
        v_sub_u32 v5, v3, v5
        v_lshlrev_b32 v5, 7, v5
        """)
        emit_f(g, "v6", "v4", "v7")
        g(f"""
        v_xor_b32 v6, v6, v2
        v_lshl_add_u32 v5, v6, 4, v5
        v_mul_u32_u24 v4, 12288, v4
        v_add_u32 v4, v4, v5
        v_subrev_u32 v{LWQ+i}, {1024*(i%4)}, v4
        """)
        if i < 6:
            g(f"""
            v_lshlrev_b32 v5, 7, v1
            v_lshl_add_u32 v{LKV+i}, v6, 4, v5
            """)
    for i in range(4):
        g(f"""
        v_add_u32 v3, {8*i}, v1
        v_bfe_u32 v4, v3, 1, 3
        v_xor_b32 v4, v4, v2
        v_mul_u32_u24 v3, 1280, v3
        v_lshl_add_u32 v3, v4, 4, v3
        v_subrev_u32 v{LX+i}, {1024*i}, v3
        """)
    g(f"""
    s_mul_i32 s57, s36, 384
    s_mul_i32 s90, s37, 122880
    s_mov_b32 s58, s90
    s_mul_i32 s91, s43, {32*UNIT}
    s_mul_i32 s92, s44, 160
    s_mov_b32 s59, {PB0}
    """)
    ld_qchunk(g)
    for i in range(20):
        g(f"""
        v_add_u32 v3, {64*i}, {LANE}
        v_mul_u32_u24 v4, 6554, v3
        v_lshrrev_b32 v4, 16, v4
        v_mul_u32_u24 v5, 10, v4
        v_sub_u32 v5, v3, v5
        v_mul_u32_u24 v4, 1280, v4
        v_lshl_add_u32 v4, v5, 4, v4
        v_subrev_u32 v{LWO+i}, {1024*(i%4)}, v4
        """)
    g(f"""
    v_min_u32 v3, 11, {LANE}
    """)
    div3(g, "v4", "v3")
    g(f"""
    v_mul_u32_u24 v5, 3, v4
    v_sub_u32 v5, v3, v5
    s_lshl_b32 s53, s37, 2
    v_add_u32 v4, s53, v4
    v_mul_u32_u24 v4, 12288, v4
    v_lshl_add_u32 v{LTQ}, v5, 7, v4
    v_min_u32 v3, 39, {LANE}
    s_mul_i32 s53, s41, 40
    v_add_u32 v3, s53, v3
    v_lshlrev_b32 v{LTW}, 7, v3
    s_lshr_b32 s53, s41, 4
    s_mul_i32 s53, s53, 48
    v_min_u32 v3, 47, {LANE}
    v_add_u32 v3, s53, v3
    v_mul_u32_u24 v{LTX}, 1280, v3
    """)
    for k in range(2):
        g(f"""
        v_add_u32 v3, {64*k}, {LANE}
        v_min_u32 v3, 119, v3
        """)
        div3(g, "v4", "v3")
        g(f"""
        v_mul_u32_u24 v5, 3, v4
        v_sub_u32 v5, v3, v5
        v_lshrrev_b32 v6, 2, v4
        v_and_b32 v4, 3, v4
        v_lshl_add_u32 v4, v6, 6, v4
        s_lshl_b32 s53, s37, 2
        v_add_u32 v4, s53, v4
        v_mul_u32_u24 v4, 12288, v4
        v_lshl_add_u32 v{LSQ+k}, v5, 7, v4
        s_mul_i32 s53, s41, 120
        v_add_u32 v3, s53, v3
        v_lshlrev_b32 v{LSW+k}, 7, v3
        """)
    DO = OPT['DO']
    g(f"""
    v_min_u32 v3, 23, {LANE}
    v_lshlrev_b32 v3, {0 if OPT['tol'] else 3}, v3
    s_mul_i32 s53, s44, {24 if OPT['tol'] else 1}
    v_add_u32 v3, s53, v3
    v_lshlrev_b32 v{LTO}, 7, v3
    v_lshlrev_b32 v{LLIN}, 4, {LANE}
    v_min_u32 v3, 7, {LANE}
    v_lshlrev_b32 v{LPOFF}, 2, v3
    v_lshlrev_b32 v{LSIG}, 9, v3
    v_mov_b32 v{LONE}, 1
    v_and_b32 v3, 1, {LANE}
    v_lshlrev_b32 v{LRDY}, 2, v3
    s_lshl_b32 s63, s43, 3
    s_add_u32 s63, s63, s44
    s_lshl_b32 s63, s63, 9
    s_add_u32 s63, s63, {FLOFF}
    s_lshl_b32 s49, s42, 12
    s_lshl_b32 s53, s39, 2
    s_add_u32 s49, s49, s53
    s_add_u32 s49, s49, {FLOFF}
    s_lshl_b32 s51, s42, 3
    s_mov_b32 s52, 28
    s_mov_b32 s55, 0          ; T
    s_mov_b32 s56, 1
    s_mov_b32 s48, 0
    s_lshl_b32 s60, s37, 5
    s_add_u32 s60, s60, s36
    s_mul_i32 s60, s60, 196608
    s_mov_b32 s61, s60
    s_mov_b32 s62, {40 - D}
    s_waitcnt vmcnt(0)
    LD_loop:
    """)
    bar(g)
    fstamp(g, 0)
    g(f"""
    s_cmp_lg_u32 s55, s52
    s_cbranch_scc1 LD_nosig
    s_mov_b64 exec, 0xff
    buffer_store_dword v{LONE}, v{LSIG}, {SRD_WS}, s49 offen sc1
    s_mov_b64 exec, -1
    s_add_u32 s49, s49, 128
    s_add_u32 s52, s52, 16
    s_cmp_eq_u32 s52, 76
    s_cselect_b32 s52, 75, s52
    s_cmp_gt_u32 s52, 76
    s_cselect_b32 s52, 1000, s52
    LD_nosig:
    s_cmp_lg_u32 s55, 20
    s_cbranch_scc1 LD_nordy
    buffer_load_dword v{LPOLL}, v{LRDY}, {SRD_DBG}, s51 offen sc1
    LD_nordy:
    s_add_u32 s53, s56, 1
    s_cmp_lg_u32 s53, s62
    s_cbranch_scc1 LD_nopoll
    buffer_load_dword v{LPOLL}, v{LPOFF}, {SRD_WS}, s63 offen sc1
    LD_nopoll:
    s_xor_b32 s59, s59, {PB0 ^ (PB0 + PBSZ)}
    s_and_b32 s53, s55, 15
    s_cmp_lg_u32 s53, 9
    s_cbranch_scc1 LD_norm
    s_cmp_gt_u32 s55, 57
    s_cbranch_scc1 LD_norm
    s_cmp_ge_u32 s55, {57 if OPT['slow'] else 0}
    s_cbranch_scc1 LD_h3
    s_cmp_lg_u32 s55, 9
    s_cbranch_scc1 LD_h2
    s_mul_i32 s57, s36, 384
    buffer_load_dword v{LDUM}, v{LSQ}, {SRD_WQ}, s57 offen offset:1536
    buffer_load_dword v{LDUM}, v{LSQ+1}, {SRD_WQ}, s57 offen offset:1536
    buffer_load_dword v{LDUM}, v{LSQ}, {SRD_WQ}, s57 offen offset:2304
    buffer_load_dword v{LDUM}, v{LSQ+1}, {SRD_WQ}, s57 offen offset:2304
    s_branch LD_h3
    LD_h2:
    s_lshl_b32 s57, s50, 3
    s_lshr_b32 s53, s55, 5
    s_lshl_b32 s53, s53, 2
    s_add_u32 s57, s57, s53
    s_mul_i32 s57, s57, {192*1280}
    buffer_load_dword v{LDUM}, v{LSW}, {SRD_WO}, s57 offen
    buffer_load_dword v{LDUM}, v{LSW+1}, {SRD_WO}, s57 offen
    s_add_u32 s57, s57, {384*1280}
    buffer_load_dword v{LDUM}, v{LSW}, {SRD_WO}, s57 offen
    buffer_load_dword v{LDUM}, v{LSW+1}, {SRD_WO}, s57 offen
    LD_h3:
    buffer_load_dword v{LDUM}, v{LPOFF}, {SRD_X}, 0 offen
    buffer_load_dword v{LDUM}, v{LPOFF}, {SRD_X}, 0 offen
    s_branch LD_tdone
    LD_norm:
    s_cmp_ge_u32 s56, 40
    s_cbranch_scc1 LD_o
    """)
    q_off(g, "s56", "s57", "s58", OPT["fix"])
    ld_qchunk(g)
    g(f"""
    s_branch LD_kv
    LD_o:
    s_cmp_ge_u32 s56, 88
    s_cbranch_scc1 LD_kv
    """)
    o_off(g, "s56", "s58", "s57", OPT["fix"])
    g("s_add_u32 s58, s58, s92")
    ld_ochunk(g)
    g("LD_kv:")
    fstamp(g, 1)
    g(f"""
    s_add_u32 s93, s56, {D}
    s_min_u32 s93, s93, 87
    s_cmp_ge_u32 s93, 40
    s_cbranch_scc1 LD_tw
    """)
    q_off(g, "s93", "s57", "s58", OPT["notouch"])
    g(f"""
    buffer_load_dword v{LDUM}, v{LTX}, {SRD_X}, s58 offen {OPT['tp']}
    s_branch LD_t2
    LD_tw:
    """)
    o_off(g, "s93", "s57", "s58", OPT["notouch"])
    g(f"""
    buffer_load_dword v{LDUM}, v{LTO}, {SRD_WS}, {"s58" if OPT['to'] else "s91"} offen {OPT['top']}
    LD_t2:
    s_add_u32 s93, s56, {OPT['DW']}
    s_min_u32 s93, s93, 87
    s_add_u32 s56, s56, 1
    s_cmp_ge_u32 s93, 40
    s_cbranch_scc1 LD_tw2
    """)
    q_off(g, "s93", "s57", None, OPT["notouch"])
    g(f"""
    buffer_load_dword v{LDUM}, v{LTQ}, {SRD_WQ}, s57 offen {OPT['tp']}
    s_branch LD_tdone
    LD_tw2:
    """)
    o_off(g, "s93", "s57", None, OPT["notouch"])
    g(f"""
    buffer_load_dword v{LDUM}, v{LTW}, {SRD_WO}, {"s57" if OPT['tw'] else "0"} offen {OPT['tp']}
    LD_tdone:
    s_mov_b32 s94, 0
    s_cmp_lt_u32 s55, 8
    s_cbranch_scc1 LD_wait
    s_cmp_gt_u32 s55, 72
    s_cbranch_scc1 LD_wait
    s_cmp_eq_u32 s55, 72
    s_cbranch_scc1 LD_v
    """)
    ld_block(g, SRD_K, "s60", 0)
    g(f"""
    s_add_u32 s94, s94, 1
    s_add_u32 s60, s60, 12288
    s_and_b32 s53, s55, 15
    s_cmp_eq_u32 s53, 7
    s_cselect_b32 s53, 196608, 0
    s_add_u32 s60, s60, s53
    s_cmp_eq_u32 s55, 8
    s_cbranch_scc1 LD_adv
    LD_v:
    """)
    ld_block(g, SRD_V, "s61", 12288)
    g(f"""
    s_add_u32 s94, s94, 1
    s_add_u32 s61, s61, 12288
    s_and_b32 s53, s55, 15
    s_cmp_eq_u32 s53, 8
    s_cselect_b32 s53, 196608, 0
    s_add_u32 s61, s61, s53
    LD_adv:
    s_add_u32 s48, s48, {KV_SLOT}
    s_cmp_eq_u32 s48, {3*KV_SLOT}
    s_cselect_b32 s48, 0, s48
    LD_wait:
    """)
    fstamp(g, 2)
    g(f"""
    s_cmp_eq_u32 s94, 2
    s_cbranch_scc1 LD_w24
    s_cmp_eq_u32 s94, 1
    s_cbranch_scc1 LD_w12
    s_waitcnt vmcnt(2)
    s_branch LD_chk
    LD_w12:
    s_waitcnt vmcnt(14)
    s_branch LD_chk
    LD_w24:
    s_waitcnt vmcnt(26)
    LD_chk:
    s_cmp_lg_u32 s55, 20
    s_cbranch_scc1 LD_chk2
    LD_rspin:
    v_cmp_ne_u32 vcc, 0x01010101, v{LPOLL}
    s_cbranch_vccz LD_chk2
    s_sleep {OPT['slp']}
    buffer_load_dword v{LPOLL}, v{LRDY}, {SRD_DBG}, s51 offen sc1
    s_waitcnt vmcnt(0)
    s_branch LD_rspin
    LD_chk2:
    s_cmp_lg_u32 s56, s62
    s_cbranch_scc1 LD_next
    LD_spin:
    v_cmp_ne_u32 vcc, 1, v{LPOLL}
    s_cbranch_vccz LD_ok
    s_sleep {OPT['slp']}
    buffer_load_dword v{LPOLL}, v{LPOFF}, {SRD_WS}, s63 offen sc1
    s_waitcnt vmcnt(0)
    s_branch LD_spin
    LD_ok:
    s_add_u32 s62, s62, 12
    s_add_u32 s63, s63, 128
    s_cmp_gt_u32 s62, 80
    s_cselect_b32 s62, 1000, s62
    LD_next:
    s_add_u32 s55, s55, 1
    s_cmp_lt_u32 s55, 92
    s_cbranch_scc1 LD_loop
    """)
    ffin(g)
    fin(g)

PA = 0
PF = 120
PW = 200
PX = 206
PO = 208; PWO = 209; PQS = 210; PT = 196; PH = 212

def proj(g):
    g(f"""
    L_proj:
    s_sub_u32 s46, s3, 4
    v_lshrrev_b32 v1, 4, {LANE}
    v_bfe_u32 v2, {LANE}, 2, 2
    v_bfe_u32 v3, {LANE}, 1, 1
    v_and_b32 v4, 1, {LANE}
    v_and_b32 v5, 15, {LANE}
    v_lshl_add_u32 v6, v1, 3, v2
    v_mul_u32_u24 v6, 384, v6
    v_lshl_add_u32 v6, v4, 3, v6
    v_bfe_u32 v7, {LANE}, 3, 1
    v_lshlrev_b32 v7, 2, v7
    v_and_b32 v8, 1, v1
    v_lshl_add_u32 v7, v8, 1, v7
    s_mul_i32 s47, s46, 3
    """)
    stamp_init(g)
    for dt in range(3):
        g(f"""
        s_add_u32 s48, s47, {dt}
        s_and_b32 s49, s48, 3
        s_lshl_b32 s49, s49, 1
        s_lshr_b32 s48, s48, 2
        s_lshl_b32 s48, s48, 7
        s_add_u32 s48, s48, {PB0}
        """)
        for u in range(2):
            g(f"""
            v_add_u32 v9, s49, v3
            v_add_u32 v10, {u}, v7
            v_xor_b32 v9, v9, v10
            v_lshl_add_u32 v9, v9, 4, v6
            v_add_u32 v9, {4*384*u}, v9
            v_add_u32 v{PW + 2*dt + u}, s48, v9
            """)
    for s in range(2):
        g(f"""
        v_add_u32 v9, {4*s}, v1
        v_lshrrev_b32 v10, 1, v5
        v_xor_b32 v9, v9, v10
        v_lshlrev_b32 v10, 7, v5
        v_lshl_add_u32 v9, v9, 4, v10
        v_add_u32 v{PX+s}, {PB0 + 24576}, v9
        """)
    g(f"""
    s_mul_i32 s48, s46, 6144
    s_add_u32 s48, s48, {PB0}
    v_lshlrev_b32 v9, 4, {LANE}
    v_add_u32 v{PO}, s48, v9
    s_mul_i32 s48, s46, 5120
    s_add_u32 s48, s48, {PB0 + 24576}
    v_lshl_add_u32 v9, v1, 2, v2
    v_mul_u32_u24 v9, 160, v9
    v_and_b32 v10, 3, {LANE}
    v_lshl_add_u32 v9, v10, 3, v9
    v_add_u32 v{PWO}, s48, v9
    v_lshrrev_b32 v9, 1, v1
    v_lshl_add_u32 v9, v9, 5, v5
    v_lshlrev_b32 v9, 4, v9
    v_lshl_add_u32 v9, v8, 3, v9
    s_mul_i32 s48, s46, 3072
    s_add_u32 s48, s48, {PB0}
    v_add_u32 v{PQS}, s48, v9
    s_mov_b32 s54, {PBSZ}
    s_mov_b32 s56, 0
    """)
    addrs = list(range(PW, PW + 6)) + [PX, PX + 1, PO, PWO]
    def toggle(g, regs):
        for r in regs: g(f"v_add_u32 v{r}, s54, v{r}")
        g("s_sub_u32 s54, 0, s54")
    def pack(g):
        for t in range(18):
            acc = PA + 4 * t
            g(f"""
            v_cvt_pk_bf16_f32 v{PH+2*t}, v{acc}, v{acc+1}
            v_cvt_pk_bf16_f32 v{PH+2*t+1}, v{acc+2}, v{acc+3}
            """)
    def write_hold(g):
        for dt in range(3):
            for qt in range(6):
                t = dt * 6 + qt
                g(f"ds_write_b64 v{PQS}, {vr(PH+2*t,2)} offset:{(qt>>1)*12288 + dt*1024 + (qt&1)*256}")
            g("s_waitcnt lgkmcnt(6)")
        g("s_waitcnt lgkmcnt(0)")
    for r in range(120): g(f"v_mov_b32 v{PA+r}, 0")
    g("""
    s_mov_b32 s55, 0
    s_mov_b32 s57, 0
    P_loop:
    """)
    bar(g)
    g(f"""
    s_and_b32 s53, s55, 15
    s_cmp_gt_u32 s55, 58
    s_cselect_b32 s53, 0, s53
    s_cmp_eq_u32 s53, 10
    s_cbranch_scc1 P_next
    s_cmp_ge_u32 s56, 40
    s_cbranch_scc1 P_o
    """)
    b = G()
    def qreads(ks):
        fa = PF + 36 * ks
        rd = []
        for dt in range(3):
            for u in range(2):
                rd.append(f"ds_read_b64_tr_b16 {vr(fa + 4*dt + 2*u, 2)}, v{PW + 2*dt + u} offset:{12288*ks}")
        xs = [f"ds_read_b128 {vr(fa + 12 + 4*qt, 4)}, v{PX + ks} offset:{2048*qt}" for qt in range(6)]
        return rd[:2] + xs[:1] + rd[2:] + xs[1:]
    for r in qreads(0): b(r)
    r1 = qreads(1)
    for ks in range(2):
        fa = PF + 36 * ks
        for qt in range(6):
            for dt in range(3):
                acc = PA + 4 * (dt * 6 + qt)
                b(f"v_mfma_f32_16x16x32_bf16 {vr(acc,4)}, {vr(fa+4*dt,4)}, {vr(fa+12+4*qt,4)}, {vr(acc,4)}")
                if ks == 0 and r1: b(r1.pop(0))
    g.ext(add_lgkm(b.L))
    g(f"""
    s_add_u32 s57, s57, 1
    s_branch P_post
    P_o:
    """)
    b = G()
    fa = PF
    wr = []
    for nt in range(5):
        wr.append([f"ds_read_b64_tr_b16 {vr(fa + 4*nt + 2*u, 2)}, v{PWO} offset:{2560*u + 32*nt}" for u in range(2)])
    orr = [f"ds_read_b128 {vr(fa + 20 + 4*qt, 4)}, v{PO} offset:{1024*qt}" for qt in range(6)]
    seq = wr[0] + [orr[0]] + wr[1] + wr[2] + wr[3] + wr[4] + orr[1:4]
    for r in seq: b(r)
    rest = orr[4:]
    for qt in range(6):
        for nt in range(5):
            acc = PA + 4 * (qt * 5 + nt)
            b(f"v_mfma_f32_16x16x32_bf16 {vr(acc,4)}, {vr(fa+4*nt,4)}, {vr(fa+20+4*qt,4)}, {vr(acc,4)}")
            if rest: b(rest.pop(0))
    g.ext(add_lgkm(b.L))
    g(f"""
    P_post:
    s_add_u32 s56, s56, 1
    s_cmp_lg_u32 s55, 9
    s_cbranch_scc1 P_n9
    """)
    pack(g)
    g(f"""
    P_n9:
    s_cmp_lg_u32 s53, 9
    s_cbranch_scc1 P_nw
    """)
    write_hold(g)
    g(f"""
    P_nw:
    s_cmp_lg_u32 s57, 10
    s_cbranch_scc1 P_next
    s_mov_b32 s57, 0
    """)
    pack(g)
    for r in range(72): g(f"v_mov_b32 v{PA+r}, 0")
    g("P_next:")
    toggle(g, addrs)
    g(f"""
    s_add_u32 s55, s55, 1
    s_cmp_lt_u32 s55, 92
    s_cbranch_scc1 P_loop
    """)
    bar(g)
    g(f"""
    s_mul_i32 s48, s46, 30720
    v_lshlrev_b32 v{PT}, 4, {LANE}
    v_add_u32 v{PT+1}, s48, v{PT}
    """)
    for t in range(30):
        g(f"ds_write_b128 v{PT+1}, {vr(PA+4*t,4)} offset:{1024*t}")
        if t % 8 == 7: g("s_waitcnt lgkmcnt(4)")
    g(f"""
    v_and_b32 v{PT+2}, 15, {LANE}
    v_mul_u32_u24 v{PT+2}, 2560, v{PT+2}
    v_lshrrev_b32 v{PT+3}, 4, {LANE}
    v_lshl_add_u32 v{PT+2}, v{PT+3}, 3, v{PT+2}
    s_and_b32 s48, s43, 15
    s_mul_i32 s48, s48, {96*2560}
    s_mul_i32 s49, s38, 1280
    s_add_u32 s48, s48, s49
    s_mul_i32 s49, s44, 160
    s_add_u32 s48, s48, s49
    s_lshl_b32 s49, s46, 10
    v_add_u32 v{PT}, s49, v{PT}
    v_add_u32 v{PT+1}, {2*30720}, v{PT}
    s_waitcnt lgkmcnt(0)
    s_barrier
    s_mov_b32 s55, s46
    P_red:
    ds_read_b128 v[0:3], v{PT}
    ds_read_b128 v[4:7], v{PT} offset:30720
    ds_read_b128 v[8:11], v{PT+1}
    ds_read_b128 v[12:15], v{PT+1} offset:30720
    s_mul_i32 s49, s55, 52
    s_lshr_b32 s49, s49, 8
    s_mul_i32 s53, s49, 5
    s_sub_u32 s53, s55, s53
    s_mul_i32 s49, s49, {16*2560}
    s_lshl_b32 s53, s53, 5
    s_add_u32 s53, s53, s49
    s_add_u32 s53, s53, s48
    v_add_u32 v{PT}, 4096, v{PT}
    v_add_u32 v{PT+1}, 4096, v{PT+1}
    s_waitcnt lgkmcnt(0)
    """)
    for i in range(4): g(f"v_add_f32 v{i}, v{i}, v{4+i}\nv_add_f32 v{8+i}, v{8+i}, v{12+i}")
    for i in range(4): g(f"v_add_f32 v{i}, v{i}, v{8+i}")
    g(f"""
    v_cvt_pk_bf16_f32 v16, v0, v1
    v_cvt_pk_bf16_f32 v17, v2, v3
    buffer_store_dwordx2 v[16:17], v{PT+2}, {SRD_OUT}, s53 offen
    s_add_u32 s55, s55, 4
    s_cmp_lt_u32 s55, 30
    s_cbranch_scc1 P_red
    """)
    fin(g)

def build(thr=8.0):
    g = G()
    common(g)
    attention(g, thr)
    loader(g)
    proj(g)
    g("L_end:\ns_endpgm")
    lines, n = fix_hazards(g.L, verbose="-v" in sys.argv)
    print("nop states inserted:", n, " lines:", len(lines), file=sys.stderr)
    return wrap(["@launch grid=(256,1,1) block=(512,1,1) lds=163840"], [(NAME + "_kernel", "\n".join(lines) + "\n", 256, 102, 256)])

if __name__ == "__main__":
    out = sys.argv[1]
    if "--stamps" in sys.argv: STAMPS = True
    thr = 8.0
    for a in sys.argv:
        if a.startswith("--thr="): thr = float(a[6:])
        if a.startswith("--o:"):
            k, v = a[4:].split("=")
            OPT[k] = v.replace("+", " ") if not v.lstrip("-").isdigit() else int(v)
    open(out, "w").write(build(thr))
```

```python
import sys, math, struct
from asmlib import *
from isa import *

KV_SLOT = 24576
PB0 = 73728
PBSZ = 45056
PB1 = PB0 + PBSZ
XQ = 36864
XO = 0
UNIT = 36864
QOFF = 32 * 4 * 8 * UNIT
TSOFF = QOFF + 256 * 5 * UNIT
WS_BYTES = 438042624
FLOFF = QOFF
POFF = QOFF + (1 << 20)
CSC = (192 ** -0.5) * math.log2(math.e)
def fbits(x): return "0x%08x" % struct.unpack("<I", struct.pack("<f", x))[0]

SRD_K, SRD_V, SRD_WQ, SRD_WO, SRD_X, SRD_WS, SRD_OUT, SRD_DBG = [f"s[{4*i+4}:{4*i+7}]" for i in range(8)]
LANE = "v255"
STAMPS = False
OPT = dict(ost='sc1 nt', p1='nt', p2='sc1', D=3, slp=8, fine=1, thr=8, pa=0, pp=0, pl=3, la2=1, lead=6, DW=5, DO=4, pst='sc1 nt', pld='nt', obp=0, noot=0, nox=1, xbf=1, ost3='sc1')

class G:
    def __init__(self): self.L = []
    def __call__(self, s):
        for l in s.strip("\n").split("\n"):
            l = l.strip()
            if not l: continue
            self.L.append(l if l.endswith(":") else "    " + l)
    def ext(self, lines): self.L += lines

def vr(b, n=1): return f"v{b}" if n == 1 else f"v[{b}:{b+n-1}]"

def emit_f(g, dst, row, tmp):
    g(f"""
    v_lshlrev_b32 {tmp}, 1, {row}
    v_and_b32 {tmp}, 4, {tmp}
    v_bfe_u32 {dst}, {row}, 2, 2
    v_or_b32 {dst}, {dst}, {tmp}
    """)
def div3(g, dst, src):
    g(f"v_mul_u32_u24 {dst}, 171, {src}\nv_lshrrev_b32 {dst}, 9, {dst}")

_sl = [0]
def _st(g, idx, lo, hi):
    _sl[0] += 1
    n = _sl[0]
    g(f"""
    s_memtime s[96:97]
    s_waitcnt lgkmcnt(0)
    s_lshl_b64 exec, 1, {idx}
    s_cmp_ge_u32 {idx}, 64
    s_cbranch_scc1 ST_hi{n}
    v_mov_b32 v{lo}, s96
    s_branch ST_e{n}
    ST_hi{n}:
    v_mov_b32 v{hi}, s96
    ST_e{n}:
    s_mov_b64 exec, -1
    """)
def stamp(g):
    if not STAMPS: return
    _st(g, "s98", 253, 254)
    g("s_add_u32 s98, s98, 1")
def fstamp(g, k):
    if not STAMPS or not OPT['fine']: return
    g("s_sub_u32 s95, s98, 1")
    _st(g, "s95", 240 + 2 * k, 241 + 2 * k)
def ffin(g):
    if not STAMPS: return
    g(f"""
    s_mul_i32 s95, s2, 1536
    s_add_u32 s95, s95, {TSOFF + 1048576}
    v_lshlrev_b32 v252, 2, {LANE}
    """)
    for k in range(6):
        g(f"buffer_store_dword v{240+k}, v252, {SRD_WS}, s95 offen offset:{256*k}")
def bar(g):
    stamp(g)
    g("s_barrier")
def fin(g):
    if STAMPS:
        stamp(g)
        g(f"""
        s_memrealtime s[96:97]
        s_waitcnt lgkmcnt(0)
        v_writelane_b32 v254, s96, 63
        v_writelane_b32 v254, s100, 62
        v_writelane_b32 v254, s99, 61
        s_lshl_b32 s98, s2, 3
        s_add_u32 s98, s98, s3
        s_lshl_b32 s98, s98, 9
        s_add_u32 s98, s98, {TSOFF}
        v_lshlrev_b32 v252, 2, {LANE}
        buffer_store_dword v253, v252, {SRD_WS}, s98 offen
        buffer_store_dword v254, v252, {SRD_WS}, s98 offen offset:256
        """)
    g("s_endpgm")

NT = 92
H_TICKS = (10, 26, 42, 58)
def chunk_offs(c):
    if c < 40:
        return (c // 10) * 768 + (c % 10) * 64 * 12288, (c % 10) * 128
    j = c - 40; r = j // 12; jj = j % 12; ee = jj & 1; ks = jj >> 1
    return ((2 * r + ee) * 192 + 32 * ks) * 1280, (r * 4 + 2 * ee) * UNIT + ks * 6144
NQI, NOI = 36, 22
NLF = 10

class Sched: pass
def schedule():
    S = Sched()
    la2 = OPT['la2']; D = OPT['D']; DW = OPT['DW']; DO = OPT['DO']
    chunk_of = {}; c = 0
    for T in range(NT):
        if T in H_TICKS: continue
        chunk_of[T] = c; c += 1
    assert c == 88
    tick_of = {v: k for k, v in chunk_of.items()}
    buf = {}
    for T in range(NT + 1):
        buf[T] = PB1 if T & 1 else PB0
    if la2:
        for T in range(10): buf[T] = [PB1, PB0, XQ][T % 3]
        for T in range(76, NT + 1): buf[T] = [PB0, XO, PB1][(T - 76) % 3]
    issue = {}
    for T in chunk_of:
        issue[T] = T - 1
        if la2 and (T <= 9 or T >= 77): issue[T] = max(T - 2, -1)
    iss = lambda c: issue[tick_of[c]]
    tch = {T: {} for T in range(NT)}
    def add(T, k, off): tch[T].setdefault(k, []).append(off)
    def place(kind, items):
        nxt = 10 ** 9
        res = []
        for late, early, off in reversed(items):
            t = min(late, nxt - 1);
            res.append((max(t, early), off)); nxt = t
        prev = -1
        for t, off in reversed(res):
            t = max(t, prev + 1) if t <= prev else t
            add(t, kind, off); prev = t
    if not OPT['nox']: place("x", [(iss(c) - D, 8, chunk_offs(c)[1]) for c in range(10, 40)])
    place("q", [(iss(c) - DW, 8, chunk_offs(c)[0]) for c in range(10 + OPT.get('q1pre', 4), 40)])
    place("w", [(min(iss(40 + 2 * k) - DW, 74), 8, chunk_offs(40 + 2 * k)[0]) for k in range(24)])
    if not OPT['noot']: place("o", [(iss(40 + 12 * r + (k & ~1)) - DO, 28 + 16 * r, r * 4 * UNIT + k * 3072) for r in range(3) for k in range(12)])
    chk = {iss(40 + 12 * r) - 1: r for r in range(4)}
    for t, r in chk.items(): assert t >= (28 + 16 * r if r < 3 else 75)
    steps = []
    for T in range(NT):
        st = []
        if T == 75 and not OPT['noot']: st.append(dict(ob=1))
        for c in sorted(chunk_of[t] for t in chunk_of if issue[t] == T): st.append(dict(chunk=c))
        if not st: st.append(dict())
        n = max([len(v) for v in tch[T].values()], default=0)
        assert n <= 1, (T, tch[T])
        for k, v in tch[T].items(): st[-1]["t" + k] = v[0]
        n = T - 8
        if 0 <= n <= 64: st[-1]["kv"] = n
        if T in (28, 44, 60, 75): st[0]["sig"] = 1
        if T == 24: st[0]["rdy"] = 1; st[-1]["rchk"] = 1
        if 11 <= T <= 18: st[-1]["rs"] = T - 11
        if T in chk: st[0]["poll"] = 1; st[-1]["chk"] = 1
        st[-1]["last"] = 1
        st[0]["first"] = 1
        for s in st: s["tick"] = T
        steps += st
    q = []
    S.pre_chunks = [chunk_of[T] for T in sorted(chunk_of) if issue[T] == -1]
    for c in S.pre_chunks: q += [("c", c)] * NQI
    S.pre_wait = NQI * (len(S.pre_chunks) - 1)
    for s in steps:
        T = s["tick"]
        if s.get("sig"): q.append(("x",))
        if s.get("rdy") or s.get("poll"): q.append(("p", T))
        if s.get("ob"): q += [("x",)] * (10 if OPT['obp'] else 5)
        if "chunk" in s: q += [("c", s["chunk"])] * (NQI if s["chunk"] < 40 else NOI)
        q += [("x",)] * (("rs" in s) + ("tx" in s) + 2 * (("tq" in s) + ("tw" in s) + ("to" in s)))
        if "kv" in s:
            n = s["kv"]; q += [("k", n)] * (12 * ((n < 64) + (n >= 1)))
        if s.get("last"):
            need = {("p", T), ("k", T + 1 - 10)}
            if T + 1 in chunk_of: need.add(("c", chunk_of[T + 1]))
            last = max([i for i, t in enumerate(q) if t in need], default=-1)
            s["wait"] = min(len(q) - 1 - last, 63)
            q = q[last + 1:]
        keys = set(s) - {"tick", "wait"}
        s["kind"] = 0
        if keys == {"chunk", "first", "last"}:
            n = NQI if s["chunk"] < 40 else NOI
            if s["wait"] >= n: s["kind"] = 1 if s["chunk"] < 40 else 2
    S.steps = steps; S.buf = buf; S.chunk_of = chunk_of; S.tick_of = tick_of; S.issue = issue
    from collections import Counter
    cnt = Counter(s["wait"] for s in steps if s.get("last") and not s["kind"])
    S.waits = [w for w, _ in cnt.most_common()]
    assert len(S.waits) <= 16
    tab = [[0] * 128 for _ in range(NLF + 2)]
    assert len(steps) < 128, len(steps)
    for i, s in enumerate(steps):
        fl = 0
        if "chunk" in s:
            c = s["chunk"]; fl |= 1 if c < 40 else 2
            tab[1][i], tab[2][i] = chunk_offs(c)
            tab[3][i] = buf[tick_of[c]]
        if "kv" in s:
            n = s["kv"]
            if n < 64: fl |= 4; tab[4][i] = (n >> 4) * 2 * 196608 + (n & 15) * 12288
            if n >= 1: fl |= 8; m = n - 1; tab[5][i] = (m >> 4) * 2 * 196608 + (m & 15) * 12288
            fl |= (n % 3) << 20
        for b, k in enumerate(("tx", "tq", "tw", "to")):
            if k in s: fl |= 16 << b; tab[6 + b][i] = s[k]
        if s.get("sig"): fl |= 1 << 8
        if s.get("rdy"): fl |= 1 << 9
        if s.get("poll"): fl |= 1 << 10
        if s.get("rchk"): fl |= 1 << 11
        if s.get("chk"): fl |= 1 << 12
        if s.get("last"):
            fl |= 1 << 13
            if not s["kind"]: fl |= S.waits.index(s["wait"]) << 16
        if s.get("ob"): fl |= 1 << 14
        if s.get("first"): fl |= 1 << 15
        if "rs" in s: fl |= 1 << 22
        fl |= s["kind"] << 24
        tab[0][i] = fl
    tab[0][len(steps)] = 3 << 24
    for T in range(NT):
        fl = 0
        ty = lambda t: 0 if t not in chunk_of else (1 if chunk_of[t] < 40 else 2)
        fl |= ty(T)
        prev = chunk_of.get(T - 1)
        if prev is not None and prev < 40 and prev % 10 == 9 and T != 10: fl |= 4
        if T + 1 in H_TICKS: fl |= 8
        if T == 9: fl |= 16
        pend = ty(T - 1) if T != 10 else 0
        fl |= pend << 8
        if fl == 0x101: fl |= 1 << 16
        if fl == 0x202: fl |= 2 << 16
        tab[NLF][T] = fl
        tab[NLF + 1][T] = (buf[T + 1] - buf[T]) & 0xffffffff
    tab[NLF][NT] = 3 << 16
    S.tab = tab
    return S

def load_table(g, fields, dst):
    _sl[0] += 1
    n = _sl[0]
    g(f"""
    s_getpc_b64 s[64:65]
    TB_{n}:
    s_add_u32 s64, s64, L_table-TB_{n}
    s_addc_u32 s65, s65, 0
    v_lshlrev_b32 v1, 2, {LANE}
    """)
    hi = False
    for k, f in enumerate(fields):
        if f >= 8 and not hi:
            g(f"v_add_u32 v1, 4096, v1"); hi = True
        o = (f % 8) * 512
        g(f"global_load_dword v{dst+2*k}, v1, s[64:65] offset:{o}\nglobal_load_dword v{dst+2*k+1}, v1, s[64:65] offset:{o+256}")

def common(g):
    g(f"""
    s_cmp_ge_u32 s2, 256
    s_cbranch_scc1 L_end
    s_load_dwordx16 s[64:79], s[0:1], 0
    s_load_dwordx8 s[80:87], s[0:1], 64
    s_load_dwordx2 s[88:89], s[0:1], 96
    """)
    if STAMPS: g("s_mov_b32 s98, 0\ns_memrealtime s[100:101]\ns_memtime s[96:97]")
    g(f"""
    v_lshrrev_b32 v1, 6, v0
    v_and_b32 {LANE}, 63, v0
    s_and_b32 s40, s2, 7
    v_readfirstlane_b32 s3, v1
    s_lshr_b32 s41, s2, 3
    s_lshr_b32 s38, s40, 2
    s_and_b32 s50, s40, 3
    s_lshr_b32 s51, s41, 4
    s_lshl_b32 s36, s50, 3
    s_add_u32 s36, s36, s51
    s_and_b32 s37, s41, 15
    s_lshl_b32 s39, s51, 1
    s_and_b32 s44, s41, 1
    s_add_u32 s39, s39, s44
    s_lshr_b32 s43, s37, 1
    s_lshl_b32 s42, s40, 3
    s_add_u32 s42, s42, s43
    s_mov_b32 s6, {16*32*196608}
    s_mov_b32 s7, 0x20000
    s_mov_b32 s10, {16*32*196608}
    s_mov_b32 s11, 0x20000
    s_mov_b32 s14, {640*6144*2}
    s_mov_b32 s15, 0x20000
    s_mov_b32 s18, {640*6144*2}
    s_mov_b32 s19, 0x20000
    s_mov_b32 s22, {16*96*640*2}
    s_mov_b32 s23, 0x20000
    s_mov_b32 s26, {WS_BYTES}
    s_mov_b32 s27, 0x20000
    s_mov_b32 s30, {16*96*1280*2}
    s_mov_b32 s31, 0x20000
    s_mov_b32 s34, 256
    s_mov_b32 s35, 0x20000
    s_waitcnt lgkmcnt(0)
    s_cmp_eq_u32 s38, 0
    s_cselect_b32 s20, s64, s74
    s_cselect_b32 s21, s65, s75
    s_cselect_b32 s4, s66, s76
    s_cselect_b32 s5, s67, s77
    s_cselect_b32 s8, s68, s78
    s_cselect_b32 s9, s69, s79
    s_cselect_b32 s12, s70, s80
    s_cselect_b32 s13, s71, s81
    s_cselect_b32 s16, s72, s82
    s_cselect_b32 s17, s73, s83
    s_mov_b32 s28, s84
    s_mov_b32 s29, s85
    s_mov_b32 s32, s86
    s_mov_b32 s33, s87
    s_mov_b32 s24, s88
    s_mov_b32 s25, s89
    """)
    if STAMPS: g("s_mov_b32 s99, s96")
    g(f"""
    s_cmp_eq_u32 s3, 3
    s_cbranch_scc1 L_loader
    s_cmp_ge_u32 s3, 4
    s_cbranch_scc1 L_proj
    """)

O_ = 0; Q_ = 96; S_ = 144; P_ = 160; F_ = 168; NF = 8
E_ = 200
KC = 224; VC = 228
VM, VMC, VTHR, VL, VMAX, T0, T1, T2, VQOFF, VOOFF = [f"v{i}" for i in range(232, 242)]

def frag_read(j):
    b = F_ + 4 * (j % NF)
    if j >= 12:
        s = j - 12
        return [f"ds_read_b128 {vr(b,4)}, v{KC + (s & 3)} offset:{128 * (s >> 2)}"]
    t = j // 6; dt = j % 6
    off = 16 * 384 * t + 128 * (dt >> 1)
    return [f"ds_read_b64_tr_b16 {vr(b + 2*u, 2)}, v{VC + 2*u + (dt & 1)} offset:{off}" for u in range(2)]

def mfma_att(j):
    b = F_ + 4 * (j % NF)
    if j >= 12:
        s = j - 12
        c = "0" if s == 0 else vr(S_, 16)
        return f"v_mfma_f32_32x32x16_bf16 {vr(S_,16)}, {vr(b,4)}, {vr(Q_+4*s,4)}, {c}"
    t = j // 6; dt = j % 6
    return f"v_mfma_f32_32x32x16_bf16 {vr(O_+16*dt,16)}, {vr(b,4)}, {vr(P_+4*t,4)}, {vr(O_+16*dt,16)}"

def softmax_ops():
    s = S_
    ops = []
    fma = lambda e: f"v_fma_f32 v{s+e}, v{s+e}, s46, -{VMC}"
    ex = lambda e: f"v_exp_f32 v{s+e}, v{s+e}"
    add = lambda e: f"v_add_f32 {VL}, {VL}, v{s+e}"
    cvt = lambda i: f"v_cvt_pk_bf16_f32 v{P_+i}, v{s+2*i}, v{s+2*i+1}"
    for k in range(19):
        if k < 16: ops.append(fma(k))
        if 0 <= k - 1 < 16: ops.append(ex(k - 1))
        if 0 <= k - 3 < 16:
            if (k - 3) & 1: ops.append(cvt((k - 3) >> 1))
    adds = [add(e) for e in range(16)]
    return ops, adds

def max_ops():
    s = S_
    ops = [f"v_max3_f32 {VMAX}, v{s}, v{s+1}, v{s+2}", f"v_max3_f32 {T0}, v{s+3}, v{s+4}, v{s+5}"]
    r = [VMAX, T0]
    for k in range(5): ops.append(f"v_max3_f32 {r[k&1]}, {r[k&1]}, v{s+6+2*k}, v{s+7+2*k}")
    ops.append(f"v_max_f32 {VMAX}, {VMAX}, {T0}")
    return ops

def addr_adv():
    ops = [f"v_add_u32 v{KC+i}, s49, v{KC+i}" for i in range(8)]
    return ops
def slot_adv(g):
    g(f"""
    s_add_u32 s48, s48, 1
    s_cmp_eq_u32 s48, 3
    s_cselect_b32 s48, 0, s48
    s_cselect_b32 s49, {(-2*KV_SLOT) & 0xffffffff}, s45
    """)

def q_reads():
    return [f"ds_read_b128 {vr(Q_+4*s,4)}, {VQOFF} offset:{1024*s}" for s in range(12)]

def zero_O(g):
    for i in range(4): g(f"v_mov_b32 v{P_+i}, 0")
    for dt in range(6):
        g(f"v_mfma_f32_32x32x16_bf16 {vr(O_+16*dt,16)}, {vr(P_,4)}, {vr(P_,4)}, 0")
def reset_state(g):
    g(f"""
    v_mov_b32 {VM}, 0xff800000
    v_mov_b32 {VTHR}, 0xff800000
    v_mov_b32 {VMC}, 0
    v_mov_b32 {VL}, 0
    s_mov_b32 s57, 1
    """)

def att_tick(g, mode, rare, ost=None):
    LEAD = OPT['lead']
    bar(g)
    h = G()
    for j in range(LEAD):
        for r in frag_read(j): h(r)
    slot_adv(h)
    for o in max_ops(): h(o)
    h(f"v_cmp_gt_f32 vcc, {VMAX}, {VTHR}")
    lab = f"A_rare{len(rare)}"
    rare.append(lab)
    h(f"s_cbranch_vccnz {lab}\n{lab}_ret:")
    sm, adds = softmax_ops()
    k0 = max(i for i, o in enumerate(sm) if f"v_cvt_pk_bf16_f32 v{P_+3}," in o) + 1
    if OPT.get('vfirst', 1): k0 = len(sm)
    for o in sm[:k0]: h(o)
    fill = sm[k0:] + adds
    qr = q_reads() if mode == "t15" else []
    epi = []
    NM = 12 if mode == "last" else 24
    if mode != "norm":
        epi += [f"v_mov_b32 {T0}, {VL}", f"v_mov_b32 {T1}, {VL}", "s_nop 1", f"v_permlane32_swap_b32 {T0}, {T1}",
                f"v_add_f32 {T0}, {T0}, {T1}", f"v_rcp_f32 {T2}, {T0}", "s_mov_b32 s53, s54"]
        for dt in range(6):
            o = O_ + 16 * dt
            for e in range(2):
                d = E_ + 4 * ((2 * dt + e) % 6)
                rs = [o + 4*e, o + 4*e + 2, o + 8 + 4*e, o + 8 + 4*e + 2]
                for r in rs: epi += [f"v_mul_f32 v{r}, v{r}, {T2}", f"v_mul_f32 v{r+1}, v{r+1}, {T2}"]
                for i, r in enumerate(rs): epi.append(f"v_cvt_pk_bf16_f32 v{d+i}, v{r}, v{r+1}")
                epi.append(f"buffer_store_dwordx4 {vr(d,4)}, {VOOFF}, {SRD_WS}, s53 offen offset:{512*e} {ost}")
            epi.append("s_add_u32 s53, s53, 6144")
        epi.append(f"s_add_u32 s54, s54, {4*UNIT}")
    adv = addr_adv()
    for j in range(NM):
        h(mfma_att(j))
        if j + LEAD < NM:
            for r in frag_read(j + LEAD): h(r)
        if qr and j < 12: h(qr.pop(0))
        if j < 12:
            n = 4 if j < 5 else 3
            for o in fill[:n]: h(o)
            fill = fill[n:]
        else:
            assert not fill
            if epi and j >= 12:
                n = -(-len(epi) // (24 - j))
                for o in epi[:n]: h(o)
                epi = epi[n:]
            if j + LEAD >= 24 and adv:
                for o in adv[:2]: h(o)
                adv = adv[2:]
    if mode == "last":
        assert not fill
        for o in epi: h(o)
        adv = epi = []
    assert not adv and not epi and not qr
    g.ext(add_lgkm(h.L))

def rare_path(g, lab):
    g(f"""
    {lab}:
    v_mov_b32 {T0}, {VMAX}
    v_mov_b32 {T1}, {VMAX}
    v_permlane32_swap_b32 {T0}, {T1}
    v_max3_f32 {T0}, {T0}, {T1}, {VM}
    v_sub_f32 {T1}, {VM}, {T0}
    v_mul_f32 {T1}, s46, {T1}
    v_exp_f32 {T1}, {T1}
    v_mov_b32 {VM}, {T0}
    v_mul_f32 {VMC}, s46, {T0}
    v_add_f32 {VTHR}, s47, {T0}
    s_cmp_eq_u32 s57, 1
    s_mov_b32 s57, 0
    s_cbranch_scc1 {lab}_ret
    v_mul_f32 {VL}, {VL}, {T1}
    """)
    for r in range(96): g(f"v_mul_f32 v{O_+r}, v{O_+r}, {T1}")
    g(f"s_branch {lab}_ret")

def attention(g):
    LEAD = OPT['lead']
    g(f"""
    s_and_b32 s53, s3, 1
    s_lshl_b32 s53, s53, 6
    v_add_u32 v1, s53, {LANE}
    s_cmp_eq_u32 s3, 2
    s_cselect_b32 s52, {12 * OPT.get('q1pre', 4) - 1}, 119
    v_min_u32 v1, s52, v1
    v_mul_u32_u24 v2, 171, v1
    v_lshrrev_b32 v2, 9, v2
    v_mul_u32_u24 v3, 3, v2
    v_sub_u32 v3, v1, v3
    v_lshrrev_b32 v4, 2, v2
    v_and_b32 v2, 3, v2
    v_lshl_add_u32 v2, v4, 6, v2
    s_lshl_b32 s53, s37, 2
    v_add_u32 v2, s53, v2
    v_mul_u32_u24 v2, 12288, v2
    v_lshl_add_u32 v2, v3, 7, v2
    s_mul_i32 s53, s36, 384
    s_cmp_eq_u32 s3, 2
    s_cselect_b32 s52, 768, 0
    s_add_u32 s53, s53, s52
    buffer_load_dword v100, v2, {SRD_WQ}, s53 offen
    s_lshr_b32 s53, s41, 4
    s_mul_i32 s53, s53, 48
    v_min_u32 v1, 47, {LANE}
    v_add_u32 v1, s53, v1
    v_mul_u32_u24 v1, 1280, v1
    s_mul_i32 s53, s37, 122880
    s_lshl_b32 s52, s3, 7
    s_add_u32 s53, s53, s52
    buffer_load_dword v100, v1, {SRD_X}, s53 offen
    buffer_load_dword v100, v1, {SRD_X}, s53 offen offset:384
    buffer_load_dword v100, v1, {SRD_X}, s53 offen offset:768
    s_cmp_lg_u32 s3, 0
    s_cbranch_scc1 A_t1
    buffer_load_dword v100, v1, {SRD_X}, s53 offen offset:1152
    A_t1:
    v_mov_b32 v102, 0
    v_mov_b32 v103, 0
    v_mov_b32 v104, 0
    v_mov_b32 v105, 0
    v_mov_b32 v106, 1
    s_cmp_lg_u32 s3, 2
    s_cbranch_scc1 A_t2
    s_lshl_b32 s52, s2, 10
    s_add_u32 s52, s52, {FLOFF}
    v_lshlrev_b32 v5, 4, {LANE}
    buffer_store_dwordx4 v[102:105], v5, {SRD_WS}, s52 offen sc1
    A_t2:
    s_setprio {OPT['pa']}
    s_mov_b32 s46, {fbits(CSC)}
    s_mov_b32 s47, {fbits(OPT['thr'] / CSC)}
    s_mov_b32 s45, {KV_SLOT}
    s_mov_b32 s48, 0
    s_mul_i32 s52, s3, 12288
    s_add_u32 s52, s52, {PB0}
    s_lshl_b32 s54, s42, 4
    s_add_u32 s54, s54, s39
    s_mul_i32 s54, s54, {UNIT}
    s_lshl_b32 s53, s3, 11
    s_add_u32 s54, s54, s53
    v_lshlrev_b32 {VQOFF}, 4, {LANE}
    v_add_u32 {VQOFF}, s52, {VQOFF}
    v_and_b32 v1, 31, {LANE}
    v_lshrrev_b32 v2, 5, {LANE}
    v_mul_u32_u24 v3, 384, v1
    """)
    emit_f(g, "v4", "v1", "v5")
    for v in range(4):
        g(f"""
        v_add_u32 v5, {2*v}, v2
        v_xor_b32 v5, v5, v4
        v_lshl_add_u32 v{KC+v}, v5, 4, v3
        """)
    g(f"""
    v_lshrrev_b32 v5, 4, v1
    v_lshlrev_b32 v5, 10, v5
    v_and_b32 v6, 15, v1
    v_lshl_add_u32 v6, v2, 4, v6
    v_lshl_add_u32 {VOOFF}, v6, 4, v5
    v_bfe_u32 v5, {LANE}, 4, 1
    v_bfe_u32 v6, {LANE}, 2, 2
    v_bfe_u32 v7, {LANE}, 1, 1
    v_and_b32 v8, 1, {LANE}
    v_lshl_add_u32 v9, v2, 2, v6
    v_mul_u32_u24 v9, 384, v9
    v_lshl_add_u32 v9, v8, 3, v9
    v_lshl_add_u32 v10, v5, 1, v7
    v_bfe_u32 v11, {LANE}, 3, 1
    v_lshl_add_u32 v11, v11, 2, v2
    """)
    for u in range(2):
        for e in range(2):
            g(f"""
            v_add_u32 v12, {4*e}, v10
            v_add_u32 v13, {2*u}, v11
            v_xor_b32 v12, v12, v13
            v_lshl_add_u32 v12, v12, 4, v9
            v_add_u32 v{VC + 2*u + e}, {12288 + 8*384*u}, v12
            """)
    zero_O(g)
    reset_state(g)
    g("s_mov_b32 s55, 0\nA_idle:")
    bar(g)
    g(f"""
    s_cmp_lg_u32 s55, 4
    s_cbranch_scc1 A_i2
    s_waitcnt vmcnt(0)
    A_i2:
    s_add_u32 s55, s55, 1
    s_cmp_lt_u32 s55, 10
    s_cbranch_scc1 A_idle
    """)
    bar(g)
    b = G()
    qr = q_reads()
    for j in range(12, 12 + LEAD):
        for r in frag_read(j): b(r)
        b(qr.pop(0))
    slot_adv(b)
    for j in range(12, 24):
        b(mfma_att(j))
        if j + LEAD < 24:
            for r in frag_read(j + LEAD): b(r)
            b(qr.pop(0))
    assert not qr
    for o in addr_adv(): b(o)
    g.ext(add_lgkm(b.L))
    rare = []
    g(f"""
    s_mov_b32 s56, 0
    A_unit:
    s_mov_b32 s55, 0
    A_loop:
    """)
    att_tick(g, "norm", rare)
    g(f"""
    s_waitcnt vmcnt(0)
    s_add_u32 s55, s55, 1
    s_cmp_lt_u32 s55, 15
    s_cbranch_scc1 A_loop
    """)
    g(f"""
    s_add_u32 s56, s56, 1
    s_cmp_eq_u32 s56, 4
    s_cbranch_scc1 A_done
    """)
    att_tick(g, "t15", rare, OPT['ost'])
    zero_O(g)
    reset_state(g)
    g("s_branch A_unit\nA_done:")
    att_tick(g, "last", rare, OPT['ost3'])
    g("s_waitcnt vmcnt(0)")
    bar(g)
    fin(g)
    for lab in rare: rare_path(g, lab)

LKV = 8; LWQ = 16; LX = 28; LWO = 32; LLIN = 52; LPOLL = 53; LPOFF = 54
LTQ = 55; LTW = 56; LTO = 57; LDUM = 58; LTX = 59; LSW = 60; LSIG = 61; LONE = 62; LRDY = 63; LOB = 64
LTAB = 70

def ld_qchunk(g, a="s67", b="s68", lds="s69"):
    for hh in range(2):
        for i in range(12):
            if i % 4 == 0:
                g(f"s_add_u32 m0, {lds}, {hh*12288 + 4096*(i//4)}")
                if i == 0: g(f"s_add_u32 s53, {a}, {hh*32*12288}")
            g(f"buffer_load_dwordx4 v{LWQ+i}, {SRD_WQ}, s53 offen offset:{1024*(i%4)} lds")
    for gi in range(3):
        g(f"s_add_u32 m0, {lds}, {24576 + 4096*gi}\ns_add_u32 s53, {b}, {gi*40960}")
        for i in range(4):
            g(f"buffer_load_dwordx4 v{LX+i}, {SRD_X}, s53 offen offset:{1024*i} lds")

def ld_ochunk(g, a="s67", b="s68", lds="s69"):
    for i in range(10):
        if i % 4 == 0: g(f"s_add_u32 m0, {lds}, {12288 + 1024*i}")
        g(f"buffer_load_dwordx4 v{LWO+i}, {SRD_WO}, {a} offen offset:{1024*(i%4)} lds")
    for bb in range(2):
        for i in range(6):
            if i % 3 == 0: g(f"s_add_u32 m0, {lds}, {6144*bb + 1024*i}\ns_add_u32 s53, {b}, {UNIT*bb + 1024*i}")
            g(f"buffer_load_dwordx4 v{LLIN}, {SRD_WS}, s53 offen offset:{1024*(i%3)} lds")

def ld_block(g, srd, soff, ldsoff):
    for i in range(12):
        if i % 4 == 0: g(f"s_add_u32 m0, s76, {ldsoff + 1024*i}\ns_add_u32 s53, {soff}, {1024*i}")
        g(f"buffer_load_dwordx4 v{LKV + i % 6}, {srd}, s53 offen offset:{1024*(i%4)} nt lds")

def loader(g, S):
    g(f"L_loader:\ns_setprio {OPT['pl']}")
    load_table(g, range(NLF), LTAB)
    g(f"""
    v_lshrrev_b32 v1, 3, {LANE}
    v_and_b32 v2, 7, {LANE}
    """)
    for i in range(6):
        g(f"v_add_u32 v3, {8*i}, v1")
        div3(g, "v4", "v3")
        g(f"""
        v_mul_u32_u24 v5, 3, v4
        v_sub_u32 v5, v3, v5
        v_lshlrev_b32 v5, 7, v5
        """)
        emit_f(g, "v6", "v4", "v7")
        g(f"""
        v_xor_b32 v6, v6, v2
        v_lshl_add_u32 v5, v6, 4, v5
        v_mul_u32_u24 v4, 12288, v4
        v_add_u32 v4, v4, v5
        v_subrev_u32 v{LWQ+i}, {1024*(i%4)}, v4
        v_add_u32 v{LWQ+6+i}, {16*12288 - 1024*((i+6)%4)}, v4
        v_lshlrev_b32 v5, 7, v1
        v_lshl_add_u32 v{LKV+i}, v6, 4, v5
        """)
    for i in range(2):
        g(f"""
        v_add_u32 v3, {8*i}, v1
        v_bfe_u32 v4, v3, 1, 3
        v_xor_b32 v4, v4, v2
        v_mul_u32_u24 v3, 1280, v3
        v_lshl_add_u32 v3, v4, 4, v3
        v_subrev_u32 v{LX+i}, {1024*i}, v3
        v_add_u32 v{LX+2+i}, {16*1280 - 1024*(i+2)}, v3
        """)
    g(f"""
    s_mul_i32 s90, s36, 384
    s_mul_i32 s91, s37, 122880      ; x base
    s_mul_i32 s94, s50, {8*192*1280}
    s_mul_i32 s92, s39, 320
    s_add_u32 s92, s92, s94
    s_mul_i32 s93, s42, {16*UNIT}
    s_mul_i32 s89, s39, {UNIT}
    s_add_u32 s89, s89, s93
    """)
    for c in S.pre_chunks:
        oa, ob = chunk_offs(c)
        g(f"""
        s_add_u32 s67, s90, {oa}
        s_add_u32 s68, s91, {ob}
        s_mov_b32 s69, {S.buf[S.tick_of[c]]}
        """)
        ld_qchunk(g)
    for i in range(5):
        g(f"""
        v_add_u32 v3, {64*i}, {LANE}
        v_mul_u32_u24 v4, 3277, v3
        v_lshrrev_b32 v4, 16, v4
        v_mul_u32_u24 v5, 20, v4
        v_sub_u32 v5, v3, v5
        v_lshrrev_b32 v6, 1, v4
        v_and_b32 v6, 2, v6
        v_xor_b32 v5, v5, v6
        v_mul_u32_u24 v4, 1280, v4
        v_lshl_add_u32 v4, v5, 4, v4
        """)
        for k in range(2):
            I = i + 5 * k
            d = k * 16 * 1280 - 1024 * (I % 4)
            g(f"v_add_u32 v{LWO+I}, {d}, v4" if d >= 0 else f"v_subrev_u32 v{LWO+I}, {-d}, v4")
    g(f"v_min_u32 v3, 11, {LANE}")
    div3(g, "v4", "v3")
    g(f"""
    v_mul_u32_u24 v5, 3, v4
    v_sub_u32 v5, v3, v5
    s_lshl_b32 s53, s37, 2
    v_add_u32 v4, s53, v4
    v_mul_u32_u24 v4, 12288, v4
    v_lshl_add_u32 v{LTQ}, v5, 7, v4
    v_min_u32 v3, 19, {LANE}
    v_cmp_lt_u32 vcc, 9, v3
    v_mov_b32 v4, 0
    v_mov_b32 v5, {192*1280 - 1280}
    v_cndmask_b32 v4, v4, v5, vcc
    v_lshl_add_u32 v4, v3, 7, v4
    s_mul_i32 s53, s41, 1280
    v_add_u32 v{LTW}, s53, v4
    s_lshr_b32 s53, s41, 4
    s_mul_i32 s53, s53, 48
    v_min_u32 v3, 47, {LANE}
    v_add_u32 v3, s53, v3
    v_mul_u32_u24 v{LTX}, 1280, v3
    v_min_u32 v3, 23, {LANE}
    v_lshlrev_b32 v{LTO}, 7, v3
    v_lshlrev_b32 v{LOB}, 7, {LANE}
    v_lshlrev_b32 v{LLIN}, 4, {LANE}
    v_and_b32 v3, 3, {LANE}
    v_lshlrev_b32 v{LPOFF}, 2, v3
    """)
    peers(g, f"v{LRDY}", "v3", "v4")
    g(f"""
    v_lshlrev_b32 v{LSIG}, 10, v{LRDY}
    v_mov_b32 v{LONE}, 1
    s_lshl_b32 s63, s2, 10
    s_add_u32 s63, s63, {FLOFF}
    s_lshl_b32 s49, s39, 2
    s_add_u32 s49, s49, {FLOFF}
    s_lshl_b32 s60, s37, 5
    s_add_u32 s60, s60, s36
    s_mul_i32 s60, s60, 196608      ; K/V base
    s_mov_b32 s55, 0                ; step
    s_and_b32 s61, s41, 7
    s_waitcnt vmcnt({min(63, NQI * len(S.pre_chunks))})
    """)
    def fetch(g, full=True):
        _sl[0] += 1
        n = _sl[0]
        for k in range(NLF): g(f"v_readlane_b32 s{66+k}, v{LTAB+2*k}, s55")
        g(f"""
        s_add_u32 s55, s55, 1
        s_cmp_eq_u32 s55, 64
        s_cbranch_scc1 LD_sw{n}
        LD_swr{n}:
        s_bitcmp1_b32 s66, 1
        s_cselect_b32 s53, s92, s90
        s_cselect_b32 s52, s93, s91
        s_add_u32 s67, s67, s53
        s_add_u32 s68, s68, s52
        s_lshr_b32 s77, s66, 24
        """)
        ool(f"LD_sw{n}:")
        for k in range(NLF): ool(f"v_mov_b32 v{LTAB+2*k}, v{LTAB+2*k+1}")
        ool(f"s_branch LD_swr{n}")
    ool = G()
    fetch(g)
    g(f"""
    s_waitcnt vmcnt({S.pre_wait})
    LD_disp:
    s_cmp_eq_u32 s77, 0
    s_cbranch_scc1 LD_gen
    s_cmp_eq_u32 s77, 2
    s_cbranch_scc1 LD_fo
    s_cmp_eq_u32 s77, 3
    s_cbranch_scc1 LD_end
    LD_fq:
    """)
    bar(g)
    ld_qchunk(g)
    fetch(g)
    g(f"""
    s_cmp_eq_u32 s77, 1
    s_waitcnt vmcnt({NQI})
    s_cbranch_scc1 LD_fq
    s_branch LD_disp
    LD_fo:
    """)
    bar(g)
    ld_ochunk(g)
    fetch(g)
    g(f"""
    s_cmp_eq_u32 s77, 2
    s_waitcnt vmcnt({NOI})
    s_cbranch_scc1 LD_fo
    s_branch LD_disp
    LD_gen:
    s_add_u32 s70, s70, s60
    s_add_u32 s71, s71, s60
    s_add_u32 s72, s72, s91
    s_add_u32 s73, s73, s90
    s_add_u32 s74, s74, s94
    s_add_u32 s75, s75, s89
    s_bfe_u32 s76, s66, 0x20014
    s_mul_i32 s76, s76, {KV_SLOT}
    s_mov_b32 s62, s66
    s_bitcmp1_b32 s66, 15
    s_cbranch_scc0 LD_nobar
    """)
    bar(g)
    fstamp(g, 0)
    g(f"""
    LD_nobar:
    s_and_b32 s53, s66, 0x4700
    s_cbranch_scc1 LD_misc
    LD_nomisc:
    s_bitcmp1_b32 s66, 1
    s_cbranch_scc1 LD_o
    s_bitcmp1_b32 s66, 0
    s_cbranch_scc0 LD_t
    """)
    ool(f"""
    LD_misc:
    s_bitcmp1_b32 s66, 8
    s_cbranch_scc0 LD_nosig
    s_mov_b64 exec, 15
    buffer_store_dword v{LONE}, v{LSIG}, {SRD_WS}, s49 offen sc1
    s_mov_b64 exec, -1
    s_add_u32 s49, s49, 128
    LD_nosig:
    s_bitcmp1_b32 s66, 9
    s_cbranch_scc0 LD_nordy
    buffer_load_ubyte v{LPOLL}, v{LRDY}, {SRD_DBG}, 0 offen sc1
    LD_nordy:
    s_bitcmp1_b32 s66, 10
    s_cbranch_scc0 LD_nopoll
    buffer_load_dword v{LPOLL}, v{LPOFF}, {SRD_WS}, s63 offen sc1
    LD_nopoll:
    s_bitcmp1_b32 s66, 14
    s_cbranch_scc0 LD_nomisc
    s_add_u32 s53, s89, {12*UNIT}
    """)
    for k in range(5):
        if k == 4: ool("s_mov_b32 exec_hi, 0")
        if OPT['obp']:
            ool(f"buffer_load_dword v{LDUM}, v{LOB}, {SRD_WS}, s53 offen {OPT['p1']}\nbuffer_load_dword v{LDUM}, v{LOB}, {SRD_WS}, s53 offen {OPT['p2']}")
        else:
            ool(f"buffer_load_dword v{LDUM}, v{LOB}, {SRD_WS}, s53 offen")
        ool("s_add_u32 s53, s53, 8192")
    ool("s_mov_b64 exec, -1\ns_branch LD_nomisc")
    ld_qchunk(g)
    g("s_branch LD_t\nLD_o:")
    ld_ochunk(g)
    g("LD_t:")
    fstamp(g, 1)
    for b, (v, srd, so, pair) in enumerate(((LTX, SRD_X, "s72", 0), (LTQ, SRD_WQ, "s73", 1), (LTW, SRD_WO, "s74", 1), (LTO, SRD_WS, "s75", 1))):
        g(f"s_bitcmp1_b32 s66, {4+b}\ns_cbranch_scc0 LD_nt{b}")
        if pair:
            g(f"buffer_load_dword v{LDUM}, v{v}, {srd}, {so} offen {OPT['p1']}\nbuffer_load_dword v{LDUM}, v{v}, {srd}, {so} offen {OPT['p2']}")
        else:
            g(f"buffer_load_dword v{LDUM}, v{v}, {srd}, {so} offen")
        g(f"LD_nt{b}:")
    g(f"""
    s_bitcmp1_b32 s66, 22
    s_cbranch_scc1 LD_rs
    LD_rsr:
    s_bitcmp1_b32 s66, 2
    s_cbranch_scc0 LD_nok
    """)
    ool(f"""
    LD_rs:
    s_mov_b64 exec, 1
    s_sub_u32 s61, s61, 1
    s_cbranch_scc1 LD_rs1
    buffer_load_dword v{LDUM}, v{LPOFF}, {SRD_X}, s91 offen
    s_branch LD_rs2
    LD_rs1:
    buffer_store_byte v{LONE}, v{LPOFF}, {SRD_DBG}, s2 offen sc1
    LD_rs2:
    s_mov_b64 exec, -1
    s_branch LD_rsr
    """)
    ld_block(g, SRD_K, "s70", 0)
    g(f"""
    LD_nok:
    s_bitcmp1_b32 s66, 3
    s_cbranch_scc0 LD_nov
    """)
    ld_block(g, SRD_V, "s71", 12288)
    g("LD_nov:")
    fetch(g)
    g(f"""
    s_bitcmp1_b32 s62, 13
    s_cbranch_scc0 LD_gen
    """)
    fstamp(g, 2)
    g("s_bfe_u32 s53, s62, 0x40010")
    for i, w in enumerate(S.waits):
        if i < len(S.waits) - 1:
            g(f"""
            s_cmp_lg_u32 s53, {i}
            s_cbranch_scc1 LD_w{i}
            s_waitcnt vmcnt({w})
            s_branch LD_chk
            LD_w{i}:
            """)
        else:
            g(f"s_waitcnt vmcnt({w})")
    g(f"""
    LD_chk:
    s_and_b32 s53, s62, 0x1800
    s_cbranch_scc0 LD_disp
    LD_spin:
    v_cmp_ne_u32 vcc, 1, v{LPOLL}
    s_cbranch_vccz LD_ok
    s_sleep {OPT['slp']}
    s_bitcmp1_b32 s62, 11
    s_cbranch_scc1 LD_sp2
    buffer_load_dword v{LPOLL}, v{LPOFF}, {SRD_WS}, s63 offen sc1
    s_waitcnt vmcnt(0)
    s_branch LD_spin
    LD_sp2:
    buffer_load_ubyte v{LPOLL}, v{LRDY}, {SRD_DBG}, 0 offen sc1
    s_waitcnt vmcnt(0)
    s_branch LD_spin
    LD_ok:
    s_bitcmp1_b32 s62, 12
    s_cselect_b32 s53, 128, 0
    s_add_u32 s63, s63, s53
    s_branch LD_disp
    LD_end:
    """)
    ffin(g)
    fin(g)
    g.ext(ool.L)

def peers(g, dst, t0, t1):
    g(f"""
    v_and_b32 {t0}, 1, {LANE}
    v_bfe_u32 {t1}, {LANE}, 1, 1
    v_lshl_add_u32 {t0}, {t1}, 4, {t0}
    s_lshl_b32 s53, s43, 1
    v_add_u32 {t0}, s53, {t0}
    v_lshlrev_b32 {t0}, 3, {t0}
    v_add_u32 {t0}, s40, {t0}
    v_and_b32 {t1}, 3, {LANE}
    s_and_b32 s53, s2, 0xfc
    v_add_u32 {t1}, s53, {t1}
    v_and_b32 {dst}, 4, {LANE}
    v_cmp_eq_u32 vcc, 0, {dst}
    v_cndmask_b32 {dst}, {t1}, {t0}, vcc
    """)

PA = 0; PF = 120; PTAB = 192; PT = 196; PW = 200; PX = 206; PO = 208; PWO = 209; PQS = 211; PH = 212

def proj(g, S):
    B0 = S.buf[0]
    g(f"L_proj:\ns_setprio {OPT['pp']}")
    load_table(g, [NLF, NLF + 1], PTAB)
    g(f"""
    s_sub_u32 s46, s3, 4
    v_lshrrev_b32 v1, 4, {LANE}
    v_bfe_u32 v2, {LANE}, 2, 2
    v_bfe_u32 v3, {LANE}, 1, 1
    v_and_b32 v4, 1, {LANE}
    v_and_b32 v5, 15, {LANE}
    v_lshl_add_u32 v6, v1, 3, v2
    v_mul_u32_u24 v6, 384, v6
    v_lshl_add_u32 v6, v4, 3, v6
    v_bfe_u32 v7, {LANE}, 3, 1
    v_lshlrev_b32 v7, 2, v7
    v_and_b32 v8, 1, v1
    v_lshl_add_u32 v7, v8, 1, v7
    s_mul_i32 s47, s46, 3
    """)
    for dt in range(3):
        g(f"""
        s_add_u32 s48, s47, {dt}
        s_and_b32 s49, s48, 3
        s_lshl_b32 s49, s49, 1
        s_lshr_b32 s48, s48, 2
        s_lshl_b32 s48, s48, 7
        s_add_u32 s48, s48, {B0}
        """)
        for u in range(2):
            g(f"""
            v_add_u32 v9, s49, v3
            v_add_u32 v10, {u}, v7
            v_xor_b32 v9, v9, v10
            v_lshl_add_u32 v9, v9, 4, v6
            v_add_u32 v9, {4*384*u}, v9
            v_add_u32 v{PW + 2*dt + u}, s48, v9
            """)
    for s in range(2):
        g(f"""
        v_add_u32 v9, {4*s}, v1
        v_lshrrev_b32 v10, 1, v5
        v_xor_b32 v9, v9, v10
        v_lshlrev_b32 v10, 7, v5
        v_lshl_add_u32 v9, v9, 4, v10
        v_add_u32 v{PX+s}, {B0 + 24576}, v9
        """)
    g(f"""
    s_lshr_b32 s48, s46, 1
    s_mul_i32 s48, s48, 6144
    s_add_u32 s48, s48, {B0}
    v_lshlrev_b32 v9, 4, {LANE}
    v_add_u32 v{PO}, s48, v9
    v_lshl_add_u32 v9, v1, 2, v2
    v_mul_u32_u24 v9, 320, v9
    v_and_b32 v10, 3, {LANE}
    v_lshl_add_u32 v9, v10, 3, v9
    v_add_u32 v9, {B0 + 12288}, v9
    s_and_b32 s48, s46, 1
    s_mul_i32 s48, s48, 5
    v_xor_b32 v10, s48, v8
    v_lshl_add_u32 v{PWO}, v10, 5, v9
    s_add_u32 s48, s48, 1
    v_xor_b32 v10, s48, v8
    v_lshl_add_u32 v{PWO+1}, v10, 5, v9
    v_lshrrev_b32 v9, 1, v1
    v_lshl_add_u32 v9, v9, 5, v5
    v_lshlrev_b32 v9, 4, v9
    v_lshl_add_u32 v9, v8, 3, v9
    s_mul_i32 s48, s46, 3072
    s_add_u32 s48, s48, {PB0}
    v_add_u32 v{PQS}, s48, v9
    """)
    addrs = list(range(PW, PW + 6)) + [PX, PX + 1, PO, PWO, PWO + 1]
    def pack(g):
        for t in range(18):
            acc = PA + 4 * t
            g(f"""
            v_cvt_pk_bf16_f32 v{PH+2*t}, v{acc}, v{acc+1}
            v_cvt_pk_bf16_f32 v{PH+2*t+1}, v{acc+2}, v{acc+3}
            """)
    def write_hold(g):
        for dt in range(3):
            for qt in range(6):
                t = dt * 6 + qt
                g(f"ds_write_b64 v{PQS}, {vr(PH+2*t,2)} offset:{(qt>>1)*12288 + dt*1024 + (qt&1)*256}")
            g("s_waitcnt lgkmcnt(6)")
    def qreads(ks):
        fa = PF + 36 * ks
        rd = []
        for dt in range(3):
            for u in range(2):
                rd.append(f"ds_read_b64_tr_b16 {vr(fa + 4*dt + 2*u, 2)}, v{PW + 2*dt + u} offset:{12288*ks}")
        rd += [f"ds_read_b128 {vr(fa + 12 + 4*qt, 4)}, v{PX + ks} offset:{2048*qt}" for qt in range(6)]
        return rd
    def qmfma():
        m = []
        for ks in range(2):
            fa = PF + 36 * ks
            for qt in range(6):
                for dt in range(3):
                    acc = PA + 4 * (dt * 6 + qt)
                    m.append(f"v_mfma_f32_16x16x32_bf16 {vr(acc,4)}, {vr(fa+4*dt,4)}, {vr(fa+12+4*qt,4)}, {vr(acc,4)}")
        return m
    def oreads():
        fa = PF
        rd = [f"ds_read_b128 {vr(fa + 20 + 4*qt, 4)}, v{PO} offset:{1024*qt}" for qt in range(6)]
        for nt in range(5):
            rd += [f"ds_read_b64_tr_b16 {vr(fa + 4*nt + 2*u, 2)}, v{PWO + (nt & 1)} offset:{5120*u + 64*(nt >> 1)}" for u in range(2)]
        return rd
    def omfma():
        fa = PF
        m = []
        for qt in range(6):
            for nt in range(5):
                acc = PA + 4 * (qt * 5 + nt)
                m.append(f"v_mfma_f32_16x16x32_bf16 {vr(acc,4)}, {vr(fa+4*nt,4)}, {vr(fa+20+4*qt,4)}, {vr(acc,4)}")
        return m
    def reads(g, rd):
        for i, r in enumerate(rd):
            if i >= 14: g("s_waitcnt lgkmcnt(13)")
            g(r)
    for r in range(120): g(f"v_mov_b32 v{PA+r}, 0")
    ool = G()
    def fetch(g):
        _sl[0] += 1
        n = _sl[0]
        g(f"""
        v_readlane_b32 s53, v{PTAB}, s55
        v_readlane_b32 s54, v{PTAB+2}, s55
        s_add_u32 s55, s55, 1
        s_cmp_eq_u32 s55, 64
        s_cbranch_scc1 P_sw{n}
        P_swr{n}:
        s_lshr_b32 s56, s53, 16
        """)
        ool(f"""
        P_sw{n}:
        v_mov_b32 v{PTAB}, v{PTAB+1}
        v_mov_b32 v{PTAB+2}, v{PTAB+3}
        s_branch P_swr{n}
        """)
    def adv(g, regs):
        for r in regs: g(f"v_add_u32 v{r}, s54, v{r}")
    g("s_mov_b32 s55, 0\ns_waitcnt vmcnt(0)")
    fetch(g)
    g(f"""
    P_disp:
    s_cmp_eq_u32 s56, 0
    s_cbranch_scc1 P_gen
    s_cmp_eq_u32 s56, 2
    s_cbranch_scc1 P_oo
    s_cmp_eq_u32 s56, 3
    s_cbranch_scc1 P_end
    P_qq:
    """)
    bar(g)
    r0 = qreads(0); r1 = qreads(1)
    for i, m in enumerate(qmfma()):
        g(m)
        if i < 18 and i % 3 == 2: g(r0[6 + i // 3])
        if 18 <= i < 24: g(r0[i - 18])
        if i >= 24 and i % 3 == 2 and i < 35: g(r1[6 + (i - 24) // 3])
    g("s_waitcnt lgkmcnt(6)")
    for r in r1[:6] + r1[9:]: g(r)
    adv(g, addrs)
    fetch(g)
    g(f"""
    s_cmp_eq_u32 s56, 1
    s_waitcnt lgkmcnt(0)
    s_cbranch_scc1 P_qq
    s_branch P_disp
    P_oo:
    """)
    bar(g)
    rd = oreads()
    for i, m in enumerate(omfma()):
        g(m)
        if i % 5 == 4 and i < 29: g(rd[i // 5])
        if i >= 25:
            if i == 29: g("s_waitcnt lgkmcnt(10)")
            g(rd[6 + 2 * (i - 25)]); g(rd[7 + 2 * (i - 25)])
    g(rd[5])
    adv(g, addrs[8:])
    fetch(g)
    g(f"""
    s_cmp_eq_u32 s56, 2
    s_waitcnt lgkmcnt(0)
    s_cbranch_scc1 P_oo
    s_branch P_disp
    P_gen:
    """)
    bar(g)
    g(f"""
    s_bitcmp1_b32 s53, 8
    s_cbranch_scc0 P_g1
    P_flush:
    """)
    for m in qmfma(): g(m)
    g(f"""
    P_g1:
    s_bitcmp1_b32 s53, 9
    s_cbranch_scc0 P_g2
    """)
    for m in omfma(): g(m)
    g(f"""
    P_g2:
    s_bitcmp1_b32 s53, 0
    s_cbranch_scc0 P_g3
    """)
    reads(g, qreads(0) + qreads(1))
    g(f"""
    P_g3:
    s_bitcmp1_b32 s53, 1
    s_cbranch_scc0 P_post
    """)
    reads(g, oreads())
    g(f"""
    P_post:
    s_bitcmp1_b32 s53, 4
    s_cbranch_scc0 P_nf
    s_mov_b32 s53, 12
    s_waitcnt lgkmcnt(0)
    s_branch P_flush
    P_nf:
    s_bitcmp1_b32 s53, 2
    s_cbranch_scc0 P_np
    """)
    pack(g)
    g(f"""
    P_np:
    s_bitcmp1_b32 s53, 3
    s_cbranch_scc0 P_nw
    s_waitcnt lgkmcnt(0)
    """)
    write_hold(g)
    g(f"""
    P_nw:
    s_bitcmp1_b32 s53, 2
    s_cbranch_scc0 P_next
    """)
    for r in range(72): g(f"v_mov_b32 v{PA+r}, 0")
    g("P_next:")
    adv(g, addrs)
    fetch(g)
    g(f"""
    s_waitcnt lgkmcnt(0)
    s_branch P_disp
    P_end:
    """)
    stamp(g)
    for m in omfma(): g(m)
    KEEP = PF; RX = 0
    g(f"""
    v_lshlrev_b32 v{PT}, 4, {LANE}
    s_and_b32 s48, s2, 0xfc
    s_lshl_b32 s48, s48, 17
    s_lshl_b32 s49, s50, 15
    s_add_u32 s48, s48, s49
    s_lshl_b32 s49, s46, 13
    s_add_u32 s48, s48, s49
    s_add_u32 s48, s48, {POFF}
    """)
    XB = OPT['xbf']
    for gi in range(4):
        tiles = list(range(8 * gi, min(8 * gi + 8, 30)))
        g(f"""
        s_cmp_eq_u32 s50, {gi}
        s_cbranch_scc1 P_keep{gi}
        s_add_u32 s53, s48, {gi << 17}
        s_add_u32 s54, s53, 4096
        """)
        if XB:
            for i in range(len(tiles) // 2):
                a = PA + 4 * tiles[2 * i]
                d = 152 + 4 * ((4 * gi + i) % 8)
                for k in range(4): g(f"v_cvt_pk_bf16_f32 v{d+k}, v{a+2*k}, v{a+2*k+1}")
                g(f"buffer_store_dwordx4 {vr(d,4)}, v{PT}, {SRD_WS}, s53 offen offset:{1024*i} {OPT['pst']}")
        else:
            for i, t in enumerate(tiles):
                g(f"buffer_store_dwordx4 {vr(PA+4*t,4)}, v{PT}, {SRD_WS}, {'s53' if i < 4 else 's54'} offen offset:{1024*(i%4)} {OPT['pst']}")
        g(f"P_kr{gi}:")
        ool(f"P_keep{gi}:")
        for i, t in enumerate(tiles):
            for k in range(4): ool(f"v_mov_b32 v{KEEP+4*i+k}, v{PA+4*t+k}")
        ool(f"s_branch P_kr{gi}")
    g(f"""
    v_and_b32 v{PT+2}, 15, {LANE}
    v_mul_u32_u24 v{PT+2}, 2560, v{PT+2}
    v_lshrrev_b32 v{PT+3}, 4, {LANE}
    v_lshl_add_u32 v{PT+2}, v{PT+3}, 3, v{PT+2}
    v_and_b32 v{PT+3}, 3, {LANE}
    s_and_b32 s53, s2, 0xfc
    v_add_u32 v{PT+1}, s53, v{PT+3}
    v_lshlrev_b32 v{PT+1}, 10, v{PT+1}
    v_lshlrev_b32 v{PT+3}, 2, v{PT+3}
    v_mov_b32 v{PW}, 1
    s_lshl_b32 s57, s50, 2
    s_add_u32 s57, s57, {FLOFF + 512}
    s_lshl_b32 s58, s2, 10
    s_add_u32 s58, s58, {FLOFF + 512}
    s_waitcnt vmcnt(0)
    s_barrier
    s_cmp_lg_u32 s46, 0
    s_cbranch_scc1 P_xw
    s_mov_b64 exec, 15
    buffer_store_dword v{PW}, v{PT+1}, {SRD_WS}, s57 offen sc1
    s_mov_b64 exec, -1
    P_xs:
    buffer_load_dword v{PW+1}, v{PT+3}, {SRD_WS}, s58 offen sc1
    s_waitcnt vmcnt(0)
    v_cmp_ne_u32 vcc, 1, v{PW+1}
    s_cbranch_vccz P_xw
    s_sleep {OPT['slp']}
    s_branch P_xs
    P_xw:
    s_barrier
    """)
    stamp(g)
    g(f"""
    s_lshl_b32 s48, s2, 17
    s_lshl_b32 s49, s46, 13
    s_add_u32 s48, s48, s49
    s_add_u32 s48, s48, {POFF}
    """)
    for k in range(1, 4):
        g(f"""
        s_add_u32 s53, s50, {k}
        s_and_b32 s53, s53, 3
        s_lshl_b32 s53, s53, 15
        s_add_u32 s53, s53, s48
        s_add_u32 s54, s53, 4096
        """)
        for i in range(4 if XB else 8):
            g(f"buffer_load_dwordx4 {vr(RX + 32*(k-1) + 4*i, 4)}, v{PT}, {SRD_WS}, {'s53' if i < 4 else 's54'} offen offset:{1024*(i%4)} {OPT['pld']}")
    g(f"""
    s_lshl_b32 s48, s43, 1
    s_lshr_b32 s49, s46, 1
    s_add_u32 s48, s48, s49
    s_mul_i32 s48, s48, {96*2560}
    s_mul_i32 s49, s38, 1280
    s_add_u32 s48, s48, s49
    s_mul_i32 s49, s39, 320
    s_add_u32 s48, s48, s49
    s_and_b32 s49, s46, 1
    s_mul_i32 s49, s49, 160
    s_add_u32 s48, s48, s49
    s_lshl_b32 s55, s50, 3
    """)
    def acc(k, rs):
        for r in rs:
            if XB:
                src = RX + 32 * k + r // 2
                g(f"v_and_b32 v{PW}, 0xffff0000, v{src}" if r & 1 else f"v_lshlrev_b32 v{PW}, 16, v{src}")
                g(f"v_add_f32 v{KEEP+r}, v{KEEP+r}, v{PW}")
            else:
                g(f"v_add_f32 v{KEEP+r}, v{KEEP+r}, v{RX + 32*k + r}")
    for k in range(2):
        g(f"s_waitcnt vmcnt({(2 - k) * (4 if XB else 8)})")
        acc(k, range(32))
    g("s_waitcnt vmcnt(0)")
    for i in range(8):
        if i == 6: g("s_cmp_eq_u32 s50, 3\ns_cbranch_scc1 P_fin")
        acc(2, range(4 * i, 4 * i + 4))
        g(f"""
        s_mul_i32 s49, s55, 52
        s_lshr_b32 s49, s49, 8
        s_mul_i32 s53, s49, 5
        s_sub_u32 s53, s55, s53
        s_mul_i32 s49, s49, {16*2560}
        s_lshl_b32 s53, s53, 5
        s_add_u32 s53, s53, s49
        s_add_u32 s53, s53, s48
        s_add_u32 s55, s55, 1
        v_cvt_pk_bf16_f32 v{PH+2*i}, v{KEEP+4*i}, v{KEEP+4*i+1}
        v_cvt_pk_bf16_f32 v{PH+2*i+1}, v{KEEP+4*i+2}, v{KEEP+4*i+3}
        buffer_store_dwordx2 {vr(PH+2*i,2)}, v{PT+2}, {SRD_OUT}, s53 offen
        """)
    g("P_fin:")
    fin(g)
    g.ext(ool.L)

def build():
    S = schedule()
    if "-s" in sys.argv:
        for i, s in enumerate(S.steps): print(i, s, file=sys.stderr)
        print("waits", S.waits, file=sys.stderr)
    g = G()
    common(g)
    attention(g)
    loader(g, S)
    proj(g, S)
    g("L_end:\ns_endpgm")
    lines, n = fix_hazards(g.L, verbose="-v" in sys.argv)
    print("nop states inserted:", n, " lines:", len(lines), "steps", len(S.steps), file=sys.stderr)
    lines.append(".p2align 8")
    lines.append(".type L_table,@object")
    lines.append("L_table:")
    for f in S.tab:
        for i in range(0, 128, 8):
            lines.append("    .long " + ", ".join("0x%x" % x for x in f[i:i+8]))
    lines.append(".size L_table, %d" % (len(S.tab) * 512))
    return wrap(["@launch grid=(256,1,1) block=(512,1,1) lds=163840"], [(NAME + "_kernel", "\n".join(lines) + "\n", 256, 102, 256)])

if __name__ == "__main__":
    out = sys.argv[1]
    if "--stamps" in sys.argv: STAMPS = True
    for a in sys.argv:
        if a.startswith("--o:"):
            k, v = a[4:].split("=")
            OPT[k] = v.replace("+", " ") if not v.lstrip("-").isdigit() else int(v)
    open(out, "w").write(build())
```

```python
import sys, math, struct
from asmlib import *
from isa import *

KV_SLOT = 24576
PB0 = 73728
PBSZ = 45056
PB1 = PB0 + PBSZ
XQ = 36864
XO = 0
UNIT = 36864
QOFF = 32 * 4 * 8 * UNIT
TSOFF = QOFF + 256 * 5 * UNIT
WS_BYTES = 438042624
FLOFF = QOFF
POFF = QOFF + (1 << 20)
CSC = (192 ** -0.5) * math.log2(math.e)
def fbits(x): return "0x%08x" % struct.unpack("<I", struct.pack("<f", x))[0]

SRD_K, SRD_V, SRD_WQ, SRD_WO, SRD_X, SRD_WS, SRD_OUT, SRD_DBG = [f"s[{4*i+4}:{4*i+7}]" for i in range(8)]
LANE = "v255"
STAMPS = False
OPT = dict(ost='sc1 nt', p1='nt', p2='sc1', D=3, slp=8, fine=1, thr=8, pa=0, pp=0, pl=3, la2=1, lead=6, DW=4, DO=3, pst='sc1 nt', pld='nt', obp=0, noot=0, nox=1, xbf=1, ost3='sc1', split=0, selfld=0, r1=0, r2=3, cpf=1, dyn=1, w3=72)

class G:
    def __init__(self): self.L = []
    def __call__(self, s):
        for l in s.strip("\n").split("\n"):
            l = l.strip()
            if not l: continue
            self.L.append(l if l.endswith(":") else "    " + l)
    def ext(self, lines): self.L += lines

def vr(b, n=1): return f"v{b}" if n == 1 else f"v[{b}:{b+n-1}]"

def emit_f(g, dst, row, tmp):
    g(f"""
    v_lshlrev_b32 {tmp}, 1, {row}
    v_and_b32 {tmp}, 4, {tmp}
    v_bfe_u32 {dst}, {row}, 2, 2
    v_or_b32 {dst}, {dst}, {tmp}
    """)
def div3(g, dst, src):
    g(f"v_mul_u32_u24 {dst}, 171, {src}\nv_lshrrev_b32 {dst}, 9, {dst}")

_sl = [0]
def _st(g, idx, lo, hi):
    _sl[0] += 1
    n = _sl[0]
    g(f"""
    s_memtime s[96:97]
    s_waitcnt lgkmcnt(0)
    s_lshl_b64 exec, 1, {idx}
    s_cmp_ge_u32 {idx}, 64
    s_cbranch_scc1 ST_hi{n}
    v_mov_b32 v{lo}, s96
    s_branch ST_e{n}
    ST_hi{n}:
    v_mov_b32 v{hi}, s96
    ST_e{n}:
    s_mov_b64 exec, -1
    """)
def stamp(g):
    if not STAMPS or OPT.get('lite'): return
    _st(g, "s98", 253, 254)
    g("s_add_u32 s98, s98, 1")
def fstamp(g, k):
    if not STAMPS or not OPT['fine'] or OPT.get('lite'): return
    g("s_sub_u32 s95, s98, 1")
    _st(g, "s95", 240 + 2 * k, 241 + 2 * k)
def mark(g, k):
    if not STAMPS or OPT.get('lite'): return
    g(f"""
    s_memtime s[96:97]
    s_waitcnt lgkmcnt(0)
    v_writelane_b32 v254, s96, {40 + k}
    """)
def ffin(g):
    if not STAMPS: return
    g(f"""
    s_mul_i32 s95, s2, 1536
    s_add_u32 s95, s95, {TSOFF + 1048576}
    v_lshlrev_b32 v252, 2, {LANE}
    """)
    for k in range(6):
        g(f"buffer_store_dword v{240+k}, v252, {SRD_WS}, s95 offen offset:{256*k}")
def bar(g):
    stamp(g)
    g("s_barrier")
def fin(g):
    if STAMPS:
        stamp(g)
        g(f"""
        s_memrealtime s[96:97]
        s_waitcnt lgkmcnt(0)
        v_writelane_b32 v254, s96, 63
        v_writelane_b32 v254, s100, 62
        v_writelane_b32 v254, s99, 61
        s_lshl_b32 s98, s2, 3
        s_add_u32 s98, s98, s3
        s_lshl_b32 s98, s98, 9
        s_add_u32 s98, s98, {TSOFF}
        v_lshlrev_b32 v252, 2, {LANE}
        buffer_store_dword v253, v252, {SRD_WS}, s98 offen
        buffer_store_dword v254, v252, {SRD_WS}, s98 offen offset:256
        """)
    g("s_endpgm")

NT = 92
H_TICKS = (10, 26, 42, 58)
def chunk_offs(c):
    if c < 40:
        return (c // 10) * 768 + (c % 10) * 64 * 12288, (c % 10) * 128
    j = c - 40; r = j // 12; jj = j % 12; ee = jj & 1; ks = jj >> 1
    return ((2 * r + ee) * 192 + 32 * ks) * 1280, (r * 4 + 2 * ee) * UNIT + ks * 6144
NQI, NOI = 36, 22
NLF = 10

class Sched: pass
def schedule():
    S = Sched()
    la2 = OPT['la2']; D = OPT['D']; DW = OPT['DW']; DO = OPT['DO']
    SIG0 = 30 if OPT['split'] else 28
    chunk_of = {}; c = 0
    for T in range(NT):
        if T in H_TICKS: continue
        chunk_of[T] = c; c += 1
    assert c == 88
    tick_of = {v: k for k, v in chunk_of.items()}
    buf = {}
    for T in range(NT + 1):
        buf[T] = PB1 if T & 1 else PB0
    if la2:
        for T in range(10): buf[T] = [PB1, PB0, XQ][T % 3]
        for T in range(76, NT + 1): buf[T] = [PB0, XO, PB1][(T - 76) % 3]
    issue = {}
    for T in chunk_of:
        issue[T] = T - 1
        if la2 and (T <= 9 or T >= 77): issue[T] = max(T - 2, -1)
    iss = lambda c: issue[tick_of[c]]
    tch = {T: {} for T in range(NT)}
    def add(T, k, off): tch[T].setdefault(k, []).append(off)
    def place(kind, items):
        nxt = 10 ** 9
        res = []
        for late, early, off in reversed(items):
            t = min(late, nxt - 1);
            res.append((max(t, early), off)); nxt = t
        prev = -1
        for t, off in reversed(res):
            t = max(t, prev + 1) if t <= prev else t
            add(t, kind, off); prev = t
    if not OPT['nox']: place("x", [(iss(c) - D, 8, chunk_offs(c)[1]) for c in range(10, 40)])
    if not OPT.get('noq'): place("q", [(iss(c) - DW, 8, chunk_offs(c)[0]) for c in range(10 + OPT.get('q1pre', 4), 40)])
    if not OPT.get('noq'): place("w", [(min(iss(40 + 2 * k) - DW, OPT['w3']), 8, chunk_offs(40 + 2 * k)[0]) for k in range(24)])
    if not OPT['noot']: place("o", [(iss(40 + 12 * r + (k & ~1)) - DO, SIG0 + 16 * r, r * 4 * UNIT + k * 3072) for r in range(3) for k in range(12)])
    chk = {iss(40 + 12 * r) - 1: r for r in range(4)}
    for t, r in chk.items(): assert t >= (SIG0 + 16 * r if r < 3 else 75)
    steps = []
    for T in range(NT):
        st = []
        for c in sorted(chunk_of[t] for t in chunk_of if issue[t] == T): st.append(dict(chunk=c))
        if T == 70: st[0]["ob"] = 1
        if not st: st.append(dict())
        n = max([len(v) for v in tch[T].values()], default=0)
        assert n <= 1, (T, tch[T])
        for k, v in tch[T].items(): st[-1]["t" + k] = v[0]
        n = T - 8
        if 0 <= n <= 64: st[-1]["kv"] = n
        if T in (SIG0, SIG0 + 16, SIG0 + 32): st[0]["sig"] = 1
        if T == 24: st[0]["rdy"] = 1; st[-1]["rchk"] = 1
        if 11 <= T <= 18: st[-1]["rs"] = T - 11
        if T in chk: st[0]["poll"] = 1; st[-1]["chk"] = 1
        st[-1]["last"] = 1
        st[0]["first"] = 1
        for s in st: s["tick"] = T
        steps += st
    q = []
    S.pre_chunks = [chunk_of[T] for T in sorted(chunk_of) if issue[T] == -1]
    for c in S.pre_chunks: q += [("c", c)] * NQI
    S.pre_wait = NQI * (len(S.pre_chunks) - 1)
    for s in steps:
        T = s["tick"]
        if s.get("sig"): q.append(("x",))
        if s.get("rdy") or s.get("poll"): q.append(("p", T))
        if "chunk" in s: q += [("c", s["chunk"])] * (NQI if s["chunk"] < 40 else NOI)
        q += [("x",)] * (("rs" in s) + ("tx" in s) + 2 * (("tq" in s) + ("tw" in s) + ("to" in s)))
        if "kv" in s:
            n = s["kv"]; q += [("k", n)] * (12 * ((n < 64) + (n >= 1)))
        if s.get("last"):
            need = {("p", T), ("k", T + 1 - 10)}
            if T + 1 in chunk_of: need.add(("c", chunk_of[T + 1]))
            last = max([i for i, t in enumerate(q) if t in need], default=-1)
            s["wait"] = min(len(q) - 1 - last, 63)
            q = q[last + 1:]
        keys = set(s) - {"tick", "wait"}
        s["kind"] = 0
        if keys == {"chunk", "first", "last"}:
            n = NQI if s["chunk"] < 40 else NOI
            if s["wait"] >= n: s["kind"] = 1 if s["chunk"] < 40 else 2
    S.steps = steps; S.buf = buf; S.chunk_of = chunk_of; S.tick_of = tick_of; S.issue = issue
    from collections import Counter
    cnt = Counter(s["wait"] for s in steps if s.get("last") and not s["kind"])
    S.waits = [w for w, _ in cnt.most_common()]
    assert len(S.waits) <= 16
    tab = [[0] * 128 for _ in range(NLF + 2)]
    assert len(steps) < 128, len(steps)
    for i, s in enumerate(steps):
        fl = 0
        if "chunk" in s:
            c = s["chunk"]; fl |= 1 if c < 40 else 2
            tab[1][i], tab[2][i] = chunk_offs(c if not OPT.get('fix') else (c % 10 if c < 40 else 40 + (c & 1)))
            tab[3][i] = buf[tick_of[c]]
        if "kv" in s:
            n = s["kv"]
            if n < 64: fl |= 4; tab[4][i] = (n >> 4) * 2 * 196608 + (n & 15) * 12288
            if n >= 1: fl |= 8; m = n - 1; tab[5][i] = (m >> 4) * 2 * 196608 + (m & 15) * 12288
            fl |= (n % 3) << 20
        for b, k in enumerate(("tx", "tq", "tw", "to")):
            if k in s: fl |= 16 << b; tab[6 + b][i] = s[k]
        if s.get("sig"): fl |= 1 << 8
        if s.get("rdy"): fl |= 1 << 9
        if s.get("poll"): fl |= 1 << 10
        if s.get("rchk"): fl |= 1 << 11
        if s.get("chk"): fl |= 1 << 12
        if s.get("last"):
            fl |= 1 << 13
            if not s["kind"]: fl |= S.waits.index(s["wait"]) << 16
        if s.get("ob"): fl |= 1 << 14
        if s.get("first"): fl |= 1 << 15
        if "rs" in s: fl |= 1 << 22
        fl |= s["kind"] << 24
        tab[0][i] = fl
    tab[0][len(steps)] = 3 << 24
    for T in range(NT):
        fl = 0
        ty = lambda t: 0 if t not in chunk_of else (1 if chunk_of[t] < 40 else 2)
        fl |= ty(T)
        prev = chunk_of.get(T - 1)
        if prev is not None and prev < 40 and prev % 10 == 9 and T != 10: fl |= 4
        if T + 1 in H_TICKS: fl |= 8 if T == 9 else 128
        if T == 9: fl |= 16
        if ty(T) == 1 and chunk_of[T] % 10 == 0: fl |= 32
        if prev == 39: fl |= 64
        pend = ty(T - 1) if T != 10 else 0
        fl |= pend << 8
        if fl == 0x101: fl |= 1 << 16
        if fl == 0x202: fl |= 2 << 16
        tab[NLF][T] = fl
        tab[NLF + 1][T] = (buf[T + 1] - buf[T]) & 0xffffffff
    tab[NLF][NT] = 3 << 16
    S.tab = tab
    return S

def load_table(g, fields, dst):
    _sl[0] += 1
    n = _sl[0]
    g(f"""
    s_getpc_b64 s[64:65]
    TB_{n}:
    s_add_u32 s64, s64, L_table-TB_{n}
    s_addc_u32 s65, s65, 0
    v_lshlrev_b32 v1, 2, {LANE}
    """)
    hi = False
    for k, f in enumerate(fields):
        if f >= 8 and not hi:
            g(f"v_add_u32 v1, 4096, v1"); hi = True
        o = (f % 8) * 512
        g(f"global_load_dword v{dst+2*k}, v1, s[64:65] offset:{o}\nglobal_load_dword v{dst+2*k+1}, v1, s[64:65] offset:{o+256}")

def common(g):
    g(f"""
    s_cmp_ge_u32 s2, 256
    s_cbranch_scc1 L_end
    s_load_dwordx16 s[64:79], s[0:1], 0
    s_load_dwordx8 s[80:87], s[0:1], 64
    s_load_dwordx2 s[88:89], s[0:1], 96
    """)
    if STAMPS: g("s_mov_b32 s98, 0\ns_memrealtime s[100:101]\ns_memtime s[96:97]")
    if OPT['cpf']:
        g(f"""
        s_getpc_b64 s[90:91]
        L_pc0:
        s_lshr_b32 s41, s2, 3
        s_lshl_b32 s41, s41, 3
        v_add_u32 v1, s41, v0
        v_lshlrev_b32 v1, 7, v1
        v_min_u32 v1, L_tabend-L_pc0-4, v1
        v_cmp_gt_u32 vcc, 8, v0
        s_and_saveexec_b64 s[92:93], vcc
        s_cbranch_execz L_nopf
        global_load_dword v101, v1, s[90:91]
        L_nopf:
        s_mov_b64 exec, s[92:93]
        """)
    g(f"""
    v_lshrrev_b32 v1, 6, v0
    v_and_b32 {LANE}, 63, v0
    s_and_b32 s40, s2, 7
    v_readfirstlane_b32 s3, v1
    s_lshr_b32 s41, s2, 3
    s_lshr_b32 s38, s40, 2
    s_and_b32 s50, s40, 3
    s_lshr_b32 s51, s41, 4
    s_lshl_b32 s36, s50, 3
    s_add_u32 s36, s36, s51
    s_and_b32 s37, s41, 15
    s_lshl_b32 s39, s51, 1
    s_and_b32 s44, s41, 1
    s_add_u32 s39, s39, s44
    s_lshr_b32 s43, s37, 1
    s_lshl_b32 s42, s40, 3
    s_add_u32 s42, s42, s43
    s_mov_b32 s6, {16*32*196608}
    s_mov_b32 s7, 0x20000
    s_mov_b32 s10, {16*32*196608}
    s_mov_b32 s11, 0x20000
    s_mov_b32 s14, {640*6144*2}
    s_mov_b32 s15, 0x20000
    s_mov_b32 s18, {640*6144*2}
    s_mov_b32 s19, 0x20000
    s_mov_b32 s22, {16*96*640*2}
    s_mov_b32 s23, 0x20000
    s_mov_b32 s26, {WS_BYTES}
    s_mov_b32 s27, 0x20000
    s_mov_b32 s30, {16*96*1280*2}
    s_mov_b32 s31, 0x20000
    s_mov_b32 s34, 256
    s_mov_b32 s35, 0x20000
    s_waitcnt lgkmcnt(0)
    s_cmp_eq_u32 s38, 0
    s_cselect_b32 s20, s64, s74
    s_cselect_b32 s21, s65, s75
    s_cselect_b32 s4, s66, s76
    s_cselect_b32 s5, s67, s77
    s_cselect_b32 s8, s68, s78
    s_cselect_b32 s9, s69, s79
    s_cselect_b32 s12, s70, s80
    s_cselect_b32 s13, s71, s81
    s_cselect_b32 s16, s72, s82
    s_cselect_b32 s17, s73, s83
    s_mov_b32 s28, s84
    s_mov_b32 s29, s85
    s_mov_b32 s32, s86
    s_mov_b32 s33, s87
    s_mov_b32 s24, s88
    s_mov_b32 s25, s89
    """)
    if STAMPS: g("s_mov_b32 s99, s96")
    g(f"""
    s_cmp_eq_u32 s3, 3
    s_cbranch_scc1 L_loader
    s_cmp_ge_u32 s3, 4
    s_cbranch_scc1 L_proj
    """)

O_ = 0; Q_ = 96; S_ = 144; P_ = 160; F_ = 168; NF = 8
E_ = 200
EQ = [200, 204, 208, 212, 216, 220, 242, 246]
KC = 224; VC = 228
VM, VMC, VTHR, VL, VMAX, T0, T1, T2, VQOFF, VOOFF = [f"v{i}" for i in range(232, 242)]

def pv_of(j, dm):
    return (j % 2, j // 2) if dm else (j // 6, j % 6)
def frag_read(j, dm=False):
    b = F_ + 4 * (j % NF)
    if j >= 12:
        s = j - 12
        return [f"ds_read_b128 {vr(b,4)}, v{KC + (s & 3)} offset:{128 * (s >> 2)}"]
    t, dt = pv_of(j, dm)
    off = 16 * 384 * t + 128 * (dt >> 1)
    return [f"ds_read_b64_tr_b16 {vr(b + 2*u, 2)}, v{VC + 2*u + (dt & 1)} offset:{off}" for u in range(2)]

def mfma_att(j, dm=False):
    b = F_ + 4 * (j % NF)
    if j >= 12:
        s = j - 12
        c = "0" if s == 0 else vr(S_, 16)
        return f"v_mfma_f32_32x32x16_bf16 {vr(S_,16)}, {vr(b,4)}, {vr(Q_+4*s,4)}, {c}"
    t, dt = pv_of(j, dm)
    return f"v_mfma_f32_32x32x16_bf16 {vr(O_+16*dt,16)}, {vr(b,4)}, {vr(P_+4*t,4)}, {vr(O_+16*dt,16)}"

def softmax_ops():
    s = S_
    ops = []
    fma = lambda e: f"v_fma_f32 v{s+e}, v{s+e}, s46, -{VMC}"
    ex = lambda e: f"v_exp_f32 v{s+e}, v{s+e}"
    add = lambda e: f"v_add_f32 {VL}, {VL}, v{s+e}"
    cvt = lambda i: f"v_cvt_pk_bf16_f32 v{P_+i}, v{s+2*i}, v{s+2*i+1}"
    for k in range(19):
        if k < 16: ops.append(fma(k))
        if 0 <= k - 1 < 16: ops.append(ex(k - 1))
        if 0 <= k - 3 < 16:
            if (k - 3) & 1: ops.append(cvt((k - 3) >> 1))
    adds = [add(e) for e in range(16)]
    return ops, adds

def max_ops():
    s = S_
    ops = [f"v_max3_f32 {VMAX}, v{s}, v{s+1}, v{s+2}", f"v_max3_f32 {T0}, v{s+3}, v{s+4}, v{s+5}"]
    r = [VMAX, T0]
    for k in range(5): ops.append(f"v_max3_f32 {r[k&1]}, {r[k&1]}, v{s+6+2*k}, v{s+7+2*k}")
    ops.append(f"v_max_f32 {VMAX}, {VMAX}, {T0}")
    return ops

def addr_adv():
    ops = [f"v_add_u32 v{KC+i}, s49, v{KC+i}" for i in range(8)]
    return ops
def slot_adv(g):
    g(f"""
    s_add_u32 s48, s48, 1
    s_cmp_eq_u32 s48, 3
    s_cselect_b32 s48, 0, s48
    s_cselect_b32 s49, {(-2*KV_SLOT) & 0xffffffff}, s45
    """)

def q_reads():
    return [f"ds_read_b128 {vr(Q_+4*s,4)}, {VQOFF} offset:{1024*s}" for s in range(12)]

def zero_O(g):
    for i in range(4): g(f"v_mov_b32 v{P_+i}, 0")
    for dt in range(6):
        g(f"v_mfma_f32_32x32x16_bf16 {vr(O_+16*dt,16)}, {vr(P_,4)}, {vr(P_,4)}, 0")
def reset_state(g):
    g(f"""
    v_mov_b32 {VM}, 0xff800000
    v_mov_b32 {VTHR}, 0xff800000
    v_mov_b32 {VMC}, 0
    v_mov_b32 {VL}, 0
    s_mov_b32 s57, 1
    """)

def att_tick(g, mode, rare, ost=None):
    LEAD = OPT['lead']
    dm = mode != "norm"
    bar(g)
    h = G()
    for j in range(LEAD):
        for r in frag_read(j, dm): h(r)
    slot_adv(h)
    for o in max_ops(): h(o)
    h(f"v_cmp_gt_f32 vcc, {VMAX}, {VTHR}")
    lab = f"A_rare{len(rare)}"
    rare.append(lab)
    h(f"s_cbranch_vccnz {lab}\n{lab}_ret:")
    sm, adds = softmax_ops()
    for o in sm: h(o)
    if OPT['dyn'] and not dm: h("s_setprio 0")
    fill = adds
    qr = q_reads() if mode == "t15" else []
    NM = 12 if mode == "last" else 24
    epi = {}
    if dm:
        fill = fill + [f"v_mov_b32 {T0}, {VL}", f"v_mov_b32 {T1}, {VL}", "s_mov_b32 s53, s54", f"s_add_u32 s54, s54, {4*UNIT}",
                f"v_permlane32_swap_b32 {T0}, {T1}", f"v_add_f32 {T0}, {T0}, {T1}", f"v_rcp_f32 {T1}, {T0}"]
        for dt in range(6):
            o = O_ + 16 * dt
            for e in range(2):
                k = 2 * dt + e
                d = EQ[k % 8]
                rs = [o + 4*e, o + 4*e + 2, o + 8 + 4*e, o + 8 + 4*e + 2]
                ops = [f"v_pk_mul_f32 {vr(r,2)}, {vr(r,2)}, v[238:239] op_sel_hi:[1,0]" for r in rs]
                ops += [f"v_cvt_pk_bf16_f32 v{d+i}, v{r}, v{r+1}" for i, r in enumerate(rs)]
                ops.append(f"buffer_store_dwordx4 {vr(d,4)}, {VOOFF}, {SRD_WS}, s53 offen offset:{512*e} {ost}")
                if e: ops.append("s_add_u32 s53, s53, 6144")
                epi[k + 3] = ops
    adv = addr_adv()
    for j in range(NM):
        h(mfma_att(j, dm))
        if j + LEAD < NM:
            for r in frag_read(j + LEAD, dm): h(r)
        if qr and j < 12: h(qr.pop(0))
        n = 8 if dm else 3
        for o in fill[:n]: h(o)
        fill = fill[n:]
        if j in epi:
            assert not fill
            for o in epi.pop(j): h(o)
        if j >= 12: assert not fill
        if j + LEAD >= 24 and adv:
            for o in adv[:2]: h(o)
            adv = adv[2:]
    if mode == "last":
        bar(h)
        for j in sorted(epi):
            for o in epi[j]: h(o)
        bar(h)
        adv = []; epi = {}
    assert not adv and not epi and not qr
    if OPT['dyn'] and not dm: h("s_setprio 2")
    g.ext(add_lgkm(h.L))

def rare_path(g, lab):
    g(f"""
    {lab}:
    v_mov_b32 {T0}, {VMAX}
    v_mov_b32 {T1}, {VMAX}
    v_permlane32_swap_b32 {T0}, {T1}
    v_max3_f32 {T0}, {T0}, {T1}, {VM}
    v_sub_f32 {T1}, {VM}, {T0}
    v_mul_f32 {T1}, s46, {T1}
    v_exp_f32 {T1}, {T1}
    v_mov_b32 {VM}, {T0}
    v_mul_f32 {VMC}, s46, {T0}
    v_add_f32 {VTHR}, s47, {T0}
    s_cmp_eq_u32 s57, 1
    s_mov_b32 s57, 0
    s_cbranch_scc1 {lab}_ret
    v_mul_f32 {VL}, {VL}, {T1}
    """)
    for r in range(96): g(f"v_mul_f32 v{O_+r}, v{O_+r}, {T1}")
    g(f"s_branch {lab}_ret")

def attention(g):
    LEAD = OPT['lead']
    mark(g, 0)
    def wqpat(dst, src):
        g(f"""
        v_mul_u32_u24 v2, 171, {src}
        v_lshrrev_b32 v2, 9, v2
        v_mul_u32_u24 v3, 3, v2
        v_sub_u32 v3, {src}, v3
        v_lshrrev_b32 v4, 2, v2
        v_and_b32 v2, 3, v2
        v_lshl_add_u32 v2, v4, 6, v2
        v_add_u32 v2, s52, v2
        v_mul_u32_u24 v2, 12288, v2
        v_lshl_add_u32 {dst}, v3, 7, v2
        """)
    g(f"""
    s_lshr_b32 s53, s41, 4
    s_mul_i32 s53, s53, 48
    v_min_u32 v5, 47, {LANE}
    v_add_u32 v1, s53, v5
    v_mul_u32_u24 v108, 1280, v1
    s_mul_i32 s60, s37, 122880
    s_lshl_b32 s52, s3, 9
    s_add_u32 s60, s60, s52
    s_mul_i32 s53, s3, 48
    v_add_u32 v1, s53, v5
    v_min_u32 v1, 119, v1
    s_lshl_b32 s52, s37, 2
    s_mul_i32 s61, s36, 384
    """)
    wqpat("v107", "v1")
    g(f"""
    s_cmp_lg_u32 s3, 0
    s_cbranch_scc1 A_tr0
    buffer_load_dword v100, v108, {SRD_X}, s60 offen
    buffer_load_dword v100, v107, {SRD_WQ}, s61 offen
    buffer_load_dword v100, v108, {SRD_X}, s60 offen offset:128
    buffer_load_dword v100, v108, {SRD_X}, s60 offen offset:256
    buffer_load_dword v100, v108, {SRD_X}, s60 offen offset:384
    A_tr0:
    v_min_u32 v1, {12 * OPT.get('q1pre', 4) - 1}, {LANE}
    """)
    wqpat("v109", "v1")
    g(f"""
    v_mov_b32 v102, 0
    v_mov_b32 v103, 0
    v_mov_b32 v104, 0
    v_mov_b32 v105, 0
    v_lshlrev_b32 v106, 4, {LANE}
    s_lshl_b32 s62, s2, 10
    s_add_u32 s62, s62, {FLOFF}
    s_cmp_eq_u32 s3, 1
    s_cselect_b32 s63, {OPT['r1']}, {OPT['r2']}
    s_cmp_eq_u32 s3, 0
    s_cselect_b32 s63, 100, s63
    """)
    mark(g, 1)
    g(f"""
    s_setprio {2 if OPT['dyn'] else OPT['pa']}
    s_mov_b32 s46, {fbits(CSC)}
    s_mov_b32 s47, {fbits(OPT['thr'] / CSC)}
    s_mov_b32 s45, {KV_SLOT}
    s_mov_b32 s48, 0
    s_mul_i32 s52, s3, 12288
    s_add_u32 s52, s52, {PB0}
    s_lshl_b32 s54, s42, 4
    s_add_u32 s54, s54, s39
    s_mul_i32 s54, s54, {UNIT}
    s_lshl_b32 s53, s3, 11
    s_add_u32 s54, s54, s53
    v_lshlrev_b32 {VQOFF}, 4, {LANE}
    v_add_u32 {VQOFF}, s52, {VQOFF}
    v_and_b32 v1, 31, {LANE}
    v_lshrrev_b32 v2, 5, {LANE}
    v_mul_u32_u24 v3, 384, v1
    """)
    emit_f(g, "v4", "v1", "v5")
    for v in range(4):
        g(f"""
        v_add_u32 v5, {2*v}, v2
        v_xor_b32 v5, v5, v4
        v_lshl_add_u32 v{KC+v}, v5, 4, v3
        """)
    g(f"""
    v_lshrrev_b32 v5, 4, v1
    v_lshlrev_b32 v5, 10, v5
    v_and_b32 v6, 15, v1
    v_lshl_add_u32 v6, v2, 4, v6
    v_lshl_add_u32 {VOOFF}, v6, 4, v5
    v_bfe_u32 v5, {LANE}, 4, 1
    v_bfe_u32 v6, {LANE}, 2, 2
    v_bfe_u32 v7, {LANE}, 1, 1
    v_and_b32 v8, 1, {LANE}
    v_lshl_add_u32 v9, v2, 2, v6
    v_mul_u32_u24 v9, 384, v9
    v_lshl_add_u32 v9, v8, 3, v9
    v_lshl_add_u32 v10, v5, 1, v7
    v_bfe_u32 v11, {LANE}, 3, 1
    v_lshl_add_u32 v11, v11, 2, v2
    """)
    for u in range(2):
        for e in range(2):
            g(f"""
            v_add_u32 v12, {4*e}, v10
            v_add_u32 v13, {2*u}, v11
            v_xor_b32 v12, v12, v13
            v_lshl_add_u32 v12, v12, 4, v9
            v_add_u32 v{VC + 2*u + e}, {12288 + 8*384*u}, v12
            """)
    zero_O(g)
    reset_state(g)
    g("s_mov_b32 s55, 0\nA_idle:")
    bar(g)
    g(f"""
    s_cmp_eq_u32 s55, s63
    s_cbranch_scc1 A_touch
    A_tr1:
    s_add_u32 s55, s55, 1
    s_cmp_lt_u32 s55, 10
    s_cbranch_scc1 A_idle
    s_waitcnt vmcnt(0)
    """)
    bar(g)
    b = G()
    qr = q_reads()
    for j in range(12, 12 + LEAD):
        for r in frag_read(j): b(r)
        b(qr.pop(0))
    slot_adv(b)
    for j in range(12, 24):
        b(mfma_att(j))
        if j + LEAD < 24:
            for r in frag_read(j + LEAD): b(r)
            b(qr.pop(0))
    assert not qr
    for o in addr_adv(): b(o)
    g.ext(add_lgkm(b.L))
    rare = []
    g(f"""
    s_mov_b32 s56, 0
    s_mov_b32 s58, 0
    A_unit:
    s_mov_b32 s55, 0
    A_loop:
    """)
    att_tick(g, "norm", rare)
    g(f"""
    s_waitcnt vmcnt(0)
    s_add_u32 s55, s55, 1
    s_cmp_lt_u32 s55, 15
    s_cbranch_scc1 A_loop
    """)
    g(f"""
    s_add_u32 s56, s56, 1
    s_cmp_eq_u32 s56, 4
    s_cbranch_scc1 A_done
    """)
    att_tick(g, "t15", rare, OPT['ost'])
    zero_O(g)
    reset_state(g)
    g("s_branch A_unit\nA_done:")
    att_tick(g, "last", rare, OPT['ost3'])
    peers(g, "v1", "v2", "v3")
    g(f"""
    v_lshlrev_b32 v1, 10, v1
    v_mov_b32 v2, 1
    s_mul_i32 s52, s39, 3
    s_add_u32 s52, s52, s3
    s_lshl_b32 s52, s52, 2
    s_add_u32 s52, s52, {FLOFF + 384}
    v_lshrrev_b32 v3, 4, {LANE}
    v_min_u32 v3, 2, v3
    v_mul_u32_u24 v3, 6144, v3
    v_and_b32 v4, 15, {LANE}
    v_lshl_add_u32 v3, v4, 7, v3
    s_sub_u32 s53, s54, {4*UNIT}
    s_add_u32 s54, s53, {3*6144}
    s_waitcnt vmcnt(0)
    buffer_load_dword v5, v3, {SRD_WS}, s53 offen
    buffer_load_dword v5, v3, {SRD_WS}, s54 offen
    s_mov_b64 exec, 15
    buffer_store_dword v2, v1, {SRD_WS}, s52 offen sc1
    s_mov_b64 exec, -1
    """)
    stamp(g)
    fin(g)
    g(f"""
    A_touch:
    buffer_load_dword v100, v108, {SRD_X}, s60 offen
    buffer_load_dword v100, v107, {SRD_WQ}, s61 offen
    buffer_load_dword v100, v108, {SRD_X}, s60 offen offset:128
    s_cmp_eq_u32 s3, 2
    s_cbranch_scc1 A_touch2
    buffer_load_dword v100, v108, {SRD_X}, s60 offen offset:256
    buffer_load_dword v100, v108, {SRD_X}, s60 offen offset:384
    s_branch A_tr1
    A_touch2:
    buffer_load_dword v100, v109, {SRD_WQ}, s61 offen offset:768
    buffer_store_dwordx4 v[102:105], v106, {SRD_WS}, s62 offen sc1
    s_branch A_tr1
    """)
    for lab in rare: rare_path(g, lab)

LKV = 8; LWQ = 16; LX = 28; LWO = 32; LLIN = 52; LPOLL = 53; LPOFF = 54
LTQ = 55; LTW = 56; LTO = 57; LDUM = 58; LTX = 59; LSW = 60; LSIG = 61; LONE = 62; LRDY = 63; LOB = 64
LTAB = 70

def ld_qchunk(g, a="s67", b="s68", lds="s69"):
    for hh in range(2):
        for i in range(12):
            if i % 4 == 0:
                g(f"s_add_u32 m0, {lds}, {hh*12288 + 4096*(i//4)}")
                if i == 0: g(f"s_add_u32 s53, {a}, {hh*32*12288}")
            g(f"buffer_load_dwordx4 v{LWQ+i}, {SRD_WQ}, s53 offen offset:{1024*(i%4)} lds")
    for gi in range(3):
        g(f"s_add_u32 m0, {lds}, {24576 + 4096*gi}\ns_add_u32 s53, {b}, {gi*40960}")
        for i in range(4):
            g(f"buffer_load_dwordx4 v{LX+i}, {SRD_X}, s53 offen offset:{1024*i} lds")

def ld_ochunk(g, a="s67", b="s68", lds="s69"):
    for i in range(10):
        if i % 4 == 0: g(f"s_add_u32 m0, {lds}, {12288 + 1024*i}")
        g(f"buffer_load_dwordx4 v{LWO+i}, {SRD_WO}, {a} offen offset:{1024*(i%4)} lds")
    for bb in range(2):
        for i in range(6):
            if i % 3 == 0: g(f"s_add_u32 m0, {lds}, {6144*bb + 1024*i}\ns_add_u32 s53, {b}, {UNIT*bb + 1024*i}")
            g(f"buffer_load_dwordx4 v{LLIN}, {SRD_WS}, s53 offen offset:{1024*(i%3)} lds")

def ld_block(g, srd, soff, ldsoff):
    for i in range(12):
        if i % 4 == 0: g(f"s_add_u32 m0, s76, {ldsoff + 1024*i}\ns_add_u32 s53, {soff}, {1024*i}")
        g(f"buffer_load_dwordx4 v{LKV + i % 6}, {srd}, s53 offen offset:{1024*(i%4)} {OPT.get('kvp', 'nt')} lds")

def loader(g, S):
    g(f"L_loader:\ns_setprio {OPT['pl']}")
    mark(g, 0)
    load_table(g, range(NLF), LTAB)
    g(f"""
    v_lshrrev_b32 v1, 3, {LANE}
    v_and_b32 v2, 7, {LANE}
    """)
    for i in range(6):
        g(f"v_add_u32 v3, {8*i}, v1")
        div3(g, "v4", "v3")
        g(f"""
        v_mul_u32_u24 v5, 3, v4
        v_sub_u32 v5, v3, v5
        v_lshlrev_b32 v5, 7, v5
        """)
        emit_f(g, "v6", "v4", "v7")
        g(f"""
        v_xor_b32 v6, v6, v2
        v_lshl_add_u32 v5, v6, 4, v5
        v_mul_u32_u24 v4, 12288, v4
        v_add_u32 v4, v4, v5
        v_subrev_u32 v{LWQ+i}, {1024*(i%4)}, v4
        v_add_u32 v{LWQ+6+i}, {16*12288 - 1024*((i+6)%4)}, v4
        v_lshlrev_b32 v5, 7, v1
        v_lshl_add_u32 v{LKV+i}, v6, 4, v5
        """)
    for i in range(2):
        g(f"""
        v_add_u32 v3, {8*i}, v1
        v_bfe_u32 v4, v3, 1, 3
        v_xor_b32 v4, v4, v2
        v_mul_u32_u24 v3, 1280, v3
        v_lshl_add_u32 v3, v4, 4, v3
        v_subrev_u32 v{LX+i}, {1024*i}, v3
        v_add_u32 v{LX+2+i}, {16*1280 - 1024*(i+2)}, v3
        """)
    g(f"""
    s_mul_i32 s90, s36, 384
    s_mul_i32 s91, s37, 122880      ; x base
    s_mul_i32 s94, s50, {8*192*1280}
    s_mul_i32 s92, s39, 320
    s_add_u32 s92, s92, s94
    s_mul_i32 s93, s42, {16*UNIT}
    s_mul_i32 s89, s39, {UNIT}
    s_add_u32 s89, s89, s93
    """)
    mark(g, 1)
    for c in S.pre_chunks:
        oa, ob = chunk_offs(c)
        g(f"""
        s_add_u32 s67, s90, {oa}
        s_add_u32 s68, s91, {ob}
        s_mov_b32 s69, {S.buf[S.tick_of[c]]}
        """)
        ld_qchunk(g)
    mark(g, 2)
    for i in range(5):
        g(f"""
        v_add_u32 v3, {64*i}, {LANE}
        v_mul_u32_u24 v4, 3277, v3
        v_lshrrev_b32 v4, 16, v4
        v_mul_u32_u24 v5, 20, v4
        v_sub_u32 v5, v3, v5
        v_lshrrev_b32 v6, 1, v4
        v_and_b32 v6, 2, v6
        v_xor_b32 v5, v5, v6
        v_mul_u32_u24 v4, 1280, v4
        v_lshl_add_u32 v4, v5, 4, v4
        """)
        for k in range(2):
            I = i + 5 * k
            d = k * 16 * 1280 - 1024 * (I % 4)
            g(f"v_add_u32 v{LWO+I}, {d}, v4" if d >= 0 else f"v_subrev_u32 v{LWO+I}, {-d}, v4")
    g(f"v_min_u32 v3, 11, {LANE}")
    div3(g, "v4", "v3")
    g(f"""
    v_mul_u32_u24 v5, 3, v4
    v_sub_u32 v5, v3, v5
    s_lshl_b32 s53, s37, 2
    v_add_u32 v4, s53, v4
    v_mul_u32_u24 v4, 12288, v4
    v_lshl_add_u32 v{LTQ}, v5, 7, v4
    v_min_u32 v3, 19, {LANE}
    v_cmp_lt_u32 vcc, 9, v3
    v_mov_b32 v4, 0
    v_mov_b32 v5, {192*1280 - 1280}
    v_cndmask_b32 v4, v4, v5, vcc
    v_lshl_add_u32 v4, v3, 7, v4
    s_mul_i32 s53, s41, 1280
    v_add_u32 v{LTW}, s53, v4
    s_lshr_b32 s53, s41, 4
    s_mul_i32 s53, s53, 48
    v_min_u32 v3, 47, {LANE}
    v_add_u32 v3, s53, v3
    v_mul_u32_u24 v{LTX}, 1280, v3
    v_min_u32 v3, 23, {LANE}
    v_lshlrev_b32 v{LTO}, 7, v3
    v_lshlrev_b32 v{LOB}, 7, {LANE}
    v_lshlrev_b32 v{LLIN}, 4, {LANE}
    v_and_b32 v3, 3, {LANE}
    v_lshlrev_b32 v{LPOFF}, 2, v3
    """)
    peers(g, f"v{LRDY}", "v3", "v4")
    g(f"""
    v_lshlrev_b32 v{LSIG}, 10, v{LRDY}
    v_mov_b32 v{LONE}, 1
    s_lshl_b32 s63, s2, 10
    s_add_u32 s63, s63, {FLOFF}
    s_lshl_b32 s49, s39, 2
    s_add_u32 s49, s49, {FLOFF}
    s_lshl_b32 s60, s37, 5
    s_add_u32 s60, s60, s36
    s_mul_i32 s60, s60, 196608      ; K/V base
    s_mov_b32 s55, 0                ; step
    s_and_b32 s61, s41, 7
    s_waitcnt vmcnt({min(63, NQI * len(S.pre_chunks))})
    """)
    def fetch(g, full=True):
        _sl[0] += 1
        n = _sl[0]
        for k in range(NLF): g(f"v_readlane_b32 s{66+k}, v{LTAB+2*k}, s55")
        g(f"""
        s_add_u32 s55, s55, 1
        s_cmp_eq_u32 s55, 64
        s_cbranch_scc1 LD_sw{n}
        LD_swr{n}:
        s_bitcmp1_b32 s66, 1
        s_cselect_b32 s53, s92, s90
        s_cselect_b32 s52, s93, s91
        s_add_u32 s67, s67, s53
        s_add_u32 s68, s68, s52
        s_lshr_b32 s77, s66, 24
        """)
        ool(f"LD_sw{n}:")
        for k in range(NLF): ool(f"v_mov_b32 v{LTAB+2*k}, v{LTAB+2*k+1}")
        ool(f"s_branch LD_swr{n}")
    ool = G()
    mark(g, 3)
    fetch(g)
    g(f"""
    s_waitcnt vmcnt({S.pre_wait})
    LD_disp:
    s_cmp_eq_u32 s77, 0
    s_cbranch_scc1 LD_gen
    s_cmp_eq_u32 s77, 2
    s_cbranch_scc1 LD_fo
    s_cmp_eq_u32 s77, 3
    s_cbranch_scc1 LD_end
    LD_fq:
    """)
    bar(g)
    ld_qchunk(g)
    fetch(g)
    g(f"""
    s_cmp_eq_u32 s77, 1
    s_waitcnt vmcnt({NQI})
    s_cbranch_scc1 LD_fq
    s_branch LD_disp
    LD_fo:
    """)
    bar(g)
    ld_ochunk(g)
    fetch(g)
    g(f"""
    s_cmp_eq_u32 s77, 2
    s_waitcnt vmcnt({NOI})
    s_cbranch_scc1 LD_fo
    s_branch LD_disp
    LD_gen:
    s_add_u32 s70, s70, s60
    s_add_u32 s71, s71, s60
    s_add_u32 s72, s72, s91
    s_add_u32 s73, s73, s90
    s_add_u32 s74, s74, s94
    s_add_u32 s75, s75, s89
    s_bfe_u32 s76, s66, 0x20014
    s_mul_i32 s76, s76, {KV_SLOT}
    s_mov_b32 s62, s66
    s_bitcmp1_b32 s66, 15
    s_cbranch_scc0 LD_nobar
    """)
    bar(g)
    fstamp(g, 0)
    g(f"""
    LD_nobar:
    s_and_b32 s53, s66, 0x4700
    s_cbranch_scc1 LD_misc
    LD_nomisc:
    s_bitcmp1_b32 s66, 1
    s_cbranch_scc1 LD_o
    s_bitcmp1_b32 s66, 0
    s_cbranch_scc0 LD_t
    """)
    ool(f"""
    LD_misc:
    s_bitcmp1_b32 s66, 8
    s_cbranch_scc0 LD_nosig
    s_mov_b64 exec, 15
    buffer_store_dword v{LONE}, v{LSIG}, {SRD_WS}, s49 offen sc1
    s_mov_b64 exec, -1
    s_add_u32 s49, s49, 128
    LD_nosig:
    s_bitcmp1_b32 s66, 9
    s_cbranch_scc0 LD_nordy
    buffer_load_ubyte v{LPOLL}, v{LRDY}, {SRD_DBG}, 0 offen sc1
    LD_nordy:
    s_bitcmp1_b32 s66, 10
    s_cbranch_scc0 LD_nopoll
    buffer_load_dword v{LPOLL}, v{LPOFF}, {SRD_WS}, s63 offen sc1
    LD_nopoll:
    s_bitcmp1_b32 s66, 14
    s_cbranch_scc0 LD_nomisc
    v_min_u32 v{LPOFF}, 11, {LANE}
    v_lshlrev_b32 v{LPOFF}, 2, v{LPOFF}
    s_branch LD_nomisc
    """)
    ld_qchunk(g)
    g("s_branch LD_t\nLD_o:")
    ld_ochunk(g)
    g("LD_t:")
    fstamp(g, 1)
    for b, (v, srd, so, pair) in enumerate(((LTX, SRD_X, "s72", 0), (LTQ, SRD_WQ, "s73", 1), (LTW, SRD_WO, "s74", 1), (LTO, SRD_WS, "s75", 1))):
        g(f"s_bitcmp1_b32 s66, {4+b}\ns_cbranch_scc0 LD_nt{b}")
        if pair:
            g(f"buffer_load_dword v{LDUM}, v{v}, {srd}, {so} offen {OPT['p1']}\nbuffer_load_dword v{LDUM}, v{v}, {srd}, {so} offen {OPT['p2']}")
        else:
            g(f"buffer_load_dword v{LDUM}, v{v}, {srd}, {so} offen")
        g(f"LD_nt{b}:")
    g(f"""
    s_bitcmp1_b32 s66, 22
    s_cbranch_scc1 LD_rs
    LD_rsr:
    s_bitcmp1_b32 s66, 2
    s_cbranch_scc0 LD_nok
    """)
    ool(f"""
    LD_rs:
    s_mov_b64 exec, 1
    s_sub_u32 s61, s61, 1
    s_cbranch_scc1 LD_rs1
    buffer_load_dword v{LDUM}, v{LPOFF}, {SRD_X}, s91 offen
    s_branch LD_rs2
    LD_rs1:
    buffer_store_byte v{LONE}, v{LPOFF}, {SRD_DBG}, s2 offen sc1
    LD_rs2:
    s_mov_b64 exec, -1
    s_branch LD_rsr
    """)
    ld_block(g, SRD_K, "s70", 0)
    g(f"""
    LD_nok:
    s_bitcmp1_b32 s66, 3
    s_cbranch_scc0 LD_nov
    """)
    ld_block(g, SRD_V, "s71", 12288)
    g("LD_nov:")
    fetch(g)
    g(f"""
    s_bitcmp1_b32 s62, 13
    s_cbranch_scc0 LD_gen
    """)
    fstamp(g, 2)
    g("s_bfe_u32 s53, s62, 0x40010")
    for i, w in enumerate(S.waits):
        if i < len(S.waits) - 1:
            g(f"""
            s_cmp_lg_u32 s53, {i}
            s_cbranch_scc1 LD_w{i}
            s_waitcnt vmcnt({w})
            s_branch LD_chk
            LD_w{i}:
            """)
        else:
            g(f"s_waitcnt vmcnt({w})")
    g(f"""
    LD_chk:
    s_and_b32 s53, s62, 0x1800
    s_cbranch_scc0 LD_disp
    LD_spin:
    v_cmp_ne_u32 vcc, 1, v{LPOLL}
    s_cbranch_vccz LD_ok
    s_sleep {OPT['slp']}
    s_bitcmp1_b32 s62, 11
    s_cbranch_scc1 LD_sp2
    buffer_load_dword v{LPOLL}, v{LPOFF}, {SRD_WS}, s63 offen sc1
    s_waitcnt vmcnt(0)
    s_branch LD_spin
    LD_sp2:
    buffer_load_ubyte v{LPOLL}, v{LRDY}, {SRD_DBG}, 0 offen sc1
    s_waitcnt vmcnt(0)
    s_branch LD_spin
    LD_ok:
    s_bitcmp1_b32 s62, 12
    s_cselect_b32 s53, 128, 0
    s_add_u32 s63, s63, s53
    s_branch LD_disp
    LD_end:
    """)
    ffin(g)
    fin(g)
    g.ext(ool.L)

def peers(g, dst, t0, t1):
    g(f"""
    v_and_b32 {t0}, 1, {LANE}
    v_bfe_u32 {t1}, {LANE}, 1, 1
    v_lshl_add_u32 {t0}, {t1}, 4, {t0}
    s_lshl_b32 s53, s43, 1
    v_add_u32 {t0}, s53, {t0}
    v_lshlrev_b32 {t0}, 3, {t0}
    v_add_u32 {t0}, s40, {t0}
    v_and_b32 {t1}, 3, {LANE}
    s_and_b32 s53, s2, 0xfc
    v_add_u32 {t1}, s53, {t1}
    v_and_b32 {dst}, 4, {LANE}
    v_cmp_eq_u32 vcc, 0, {dst}
    v_cndmask_b32 {dst}, {t1}, {t0}, vcc
    """)

PA = 0; PF = 120; PTAB = 192; PT = 196; PW = 200; PX = 206; PO = 208; PWO = 209; PQS = 211; PH = 212

def proj(g, S):
    B0 = S.buf[0]
    g(f"L_proj:\ns_setprio {1 if OPT['dyn'] else OPT['pp']}")
    load_table(g, [NLF, NLF + 1], PTAB)
    g(f"""
    s_sub_u32 s46, s3, 4
    v_lshrrev_b32 v1, 4, {LANE}
    v_bfe_u32 v2, {LANE}, 2, 2
    v_bfe_u32 v3, {LANE}, 1, 1
    v_and_b32 v4, 1, {LANE}
    v_and_b32 v5, 15, {LANE}
    v_lshl_add_u32 v6, v1, 3, v2
    v_mul_u32_u24 v6, 384, v6
    v_lshl_add_u32 v6, v4, 3, v6
    v_bfe_u32 v7, {LANE}, 3, 1
    v_lshlrev_b32 v7, 2, v7
    v_and_b32 v8, 1, v1
    v_lshl_add_u32 v7, v8, 1, v7
    s_mul_i32 s47, s46, 3
    """)
    for dt in range(3):
        g(f"""
        s_add_u32 s48, s47, {dt}
        s_and_b32 s49, s48, 3
        s_lshl_b32 s49, s49, 1
        s_lshr_b32 s48, s48, 2
        s_lshl_b32 s48, s48, 7
        s_add_u32 s48, s48, {B0}
        """)
        for u in range(2):
            g(f"""
            v_add_u32 v9, s49, v3
            v_add_u32 v10, {u}, v7
            v_xor_b32 v9, v9, v10
            v_lshl_add_u32 v9, v9, 4, v6
            v_add_u32 v9, {4*384*u}, v9
            v_add_u32 v{PW + 2*dt + u}, s48, v9
            """)
    for s in range(2):
        g(f"""
        v_add_u32 v9, {4*s}, v1
        v_lshrrev_b32 v10, 1, v5
        v_xor_b32 v9, v9, v10
        v_lshlrev_b32 v10, 7, v5
        v_lshl_add_u32 v9, v9, 4, v10
        v_add_u32 v{PX+s}, {B0 + 24576}, v9
        """)
    g(f"""
    s_lshr_b32 s48, s46, 1
    s_mul_i32 s48, s48, 6144
    s_add_u32 s48, s48, {B0}
    v_lshlrev_b32 v9, 4, {LANE}
    v_add_u32 v{PO}, s48, v9
    v_lshl_add_u32 v9, v1, 2, v2
    v_mul_u32_u24 v9, 320, v9
    v_and_b32 v10, 3, {LANE}
    v_lshl_add_u32 v9, v10, 3, v9
    v_add_u32 v9, {B0 + 12288}, v9
    s_and_b32 s48, s46, 1
    s_mul_i32 s48, s48, 5
    v_xor_b32 v10, s48, v8
    v_lshl_add_u32 v{PWO}, v10, 5, v9
    s_add_u32 s48, s48, 1
    v_xor_b32 v10, s48, v8
    v_lshl_add_u32 v{PWO+1}, v10, 5, v9
    v_lshrrev_b32 v9, 1, v1
    v_lshl_add_u32 v9, v9, 5, v5
    v_lshlrev_b32 v9, 4, v9
    v_lshl_add_u32 v9, v8, 3, v9
    s_mul_i32 s48, s46, 3072
    s_add_u32 s48, s48, {PB0}
    v_add_u32 v{PQS}, s48, v9
    """)
    addrs = list(range(PW, PW + 6)) + [PX, PX + 1, PO, PWO, PWO + 1]
    def pack(g):
        for t in range(18):
            acc = PA + 4 * t
            g(f"""
            v_cvt_pk_bf16_f32 v{PH+2*t}, v{acc}, v{acc+1}
            v_cvt_pk_bf16_f32 v{PH+2*t+1}, v{acc+2}, v{acc+3}
            """)
    def write_hold(g):
        for dt in range(3):
            for qt in range(6):
                t = dt * 6 + qt
                g(f"ds_write_b64 v{PQS}, {vr(PH+2*t,2)} offset:{(qt>>1)*12288 + dt*1024 + (qt&1)*256}")
            g("s_waitcnt lgkmcnt(6)")
    def qreads(ks):
        fa = PF + 36 * ks
        rd = []
        for dt in range(3):
            for u in range(2):
                rd.append(f"ds_read_b64_tr_b16 {vr(fa + 4*dt + 2*u, 2)}, v{PW + 2*dt + u} offset:{12288*ks}")
        rd += [f"ds_read_b128 {vr(fa + 12 + 4*qt, 4)}, v{PX + ks} offset:{2048*qt}" for qt in range(6)]
        return rd
    def qmfma(ks, zero=False):
        m = []
        fa = PF + 36 * ks
        for qt in range(6):
            for dt in range(3):
                acc = PA + 4 * (dt * 6 + qt)
                m.append(f"v_mfma_f32_16x16x32_bf16 {vr(acc,4)}, {vr(fa+4*dt,4)}, {vr(fa+12+4*qt,4)}, {'0' if zero else vr(acc,4)}")
        return m
    OA = PF; OA2 = PF + 48
    OB = lambda qt: PF + 20 + 4 * qt if qt < 3 else PF + 36 + 4 * (qt - 3)
    def oreads(half):
        rb = [f"ds_read_b128 {vr(OB(qt), 4)}, v{PO} offset:{1024*qt}" for qt in range(3 * half, 3 * half + 3)]
        if half: return rb
        ra = []
        for nt in range(5):
            ra += [f"ds_read_b64_tr_b16 {vr(OA + 4*nt + 2*u, 2)}, v{PWO + (nt & 1)} offset:{5120*u + 64*(nt >> 1)}" for u in range(2)]
        return rb[:1] + ra + rb[1:]
    def omfma(half):
        m = []
        fa = OA2 if half else OA
        for qt in range(3 * half, 3 * half + 3):
            for nt in range(5):
                acc = PA + 4 * (qt * 5 + nt)
                m.append(f"v_mfma_f32_16x16x32_bf16 {vr(acc,4)}, {vr(fa+4*nt,4)}, {vr(OB(qt),4)}, {vr(acc,4)}")
        return m
    acopy = [f"v_mov_b32 v{OA2+k}, v{OA+k}" for k in range(20)]
    def q0order(rd): return rd[:2] + rd[6:7] + rd[2:6] + rd[7:]
    def weave(b, ms, fill, per=1, start=0):
        fill = list(fill)
        for i, m in enumerate(ms):
            b(m)
            if i >= start:
                for o in fill[:per]: b(o)
                fill = fill[per:]
        for o in fill: b(o)
    for r in range(72, 120): g(f"v_mov_b32 v{PA+r}, 0")
    ool = G()
    def fetch(g):
        _sl[0] += 1
        n = _sl[0]
        g(f"""
        v_readlane_b32 s53, v{PTAB}, s55
        v_readlane_b32 s54, v{PTAB+2}, s55
        s_add_u32 s55, s55, 1
        s_cmp_eq_u32 s55, 64
        s_cbranch_scc1 P_sw{n}
        P_swr{n}:
        s_lshr_b32 s56, s53, 16
        """)
        ool(f"""
        P_sw{n}:
        v_mov_b32 v{PTAB}, v{PTAB+1}
        v_mov_b32 v{PTAB+2}, v{PTAB+3}
        s_branch P_swr{n}
        """)
    advs = lambda regs: [f"v_add_u32 v{r}, s54, v{r}" for r in regs]
    mark(g, 0)
    g("s_mov_b32 s55, 0\ns_waitcnt vmcnt(0)")
    mark(g, 1)
    fetch(g)
    g(f"""
    P_disp:
    s_cmp_eq_u32 s56, 0
    s_cbranch_scc1 P_gen
    s_cmp_eq_u32 s56, 2
    s_cbranch_scc1 P_oo
    s_cmp_eq_u32 s56, 3
    s_cbranch_scc1 P_end
    P_qq:
    """)
    bar(g)
    b = G()
    weave(b, qmfma(1), q0order(qreads(0)))
    weave(b, qmfma(0), qreads(1) + advs(addrs), per=2)
    g.ext(add_lgkm(b.L, drain=False))
    fetch(g)
    g(f"""
    s_cmp_eq_u32 s56, 1
    s_waitcnt lgkmcnt(0)
    s_cbranch_scc1 P_qq
    s_branch P_disp
    P_oo:
    """)
    bar(g)
    b = G()
    weave(b, omfma(1), oreads(0))
    weave(b, omfma(0), oreads(1) + advs(addrs[8:]) + acopy, per=2)
    g.ext(add_lgkm(b.L, drain=False))
    fetch(g)
    g(f"""
    s_cmp_eq_u32 s56, 2
    s_waitcnt lgkmcnt(0)
    s_cbranch_scc1 P_oo
    s_branch P_disp
    P_gen:
    """)
    bar(g)
    g("s_bitcmp1_b32 s53, 7\ns_cbranch_scc0 P_gw")
    write_hold(g)
    g("s_waitcnt lgkmcnt(0)\nP_gw:")
    g("s_bitcmp1_b32 s53, 0\ns_cbranch_scc0 P_g0")
    for r in qreads(0): g(r)
    g("P_g0:\ns_bitcmp1_b32 s53, 1\ns_cbranch_scc0 P_g0b")
    for r in oreads(0): g(r)
    g(f"""
    P_g0b:
    s_bitcmp1_b32 s53, 8
    s_cbranch_scc0 P_g1
    P_flush:
    """)
    for m in qmfma(1): g(m)
    g(f"""
    P_g1:
    s_bitcmp1_b32 s53, 9
    s_cbranch_scc0 P_g2
    """)
    for m in omfma(1): g(m)
    g(f"""
    P_g2:
    s_bitcmp1_b32 s53, 2
    s_cbranch_scc0 P_np
    """)
    pack(g)
    g(f"""
    P_np:
    s_waitcnt lgkmcnt(0)
    s_bitcmp1_b32 s53, 0
    s_cbranch_scc0 P_g3
    """)
    for r in qreads(1): g(r)
    g("s_bitcmp1_b32 s53, 5\ns_cbranch_scc1 P_gz")
    for m in qmfma(0): g(m)
    g("s_branch P_g3\nP_gz:")
    for m in qmfma(0, True): g(m)
    g(f"""
    P_g3:
    s_bitcmp1_b32 s53, 1
    s_cbranch_scc0 P_post
    """)
    for r in oreads(1): g(r)
    weave(g, omfma(0), acopy, per=2)
    g(f"""
    P_post:
    s_waitcnt lgkmcnt(0)
    s_bitcmp1_b32 s53, 4
    s_cbranch_scc0 P_nf
    s_mov_b32 s53, 12
    s_branch P_flush
    P_nf:
    s_bitcmp1_b32 s53, 3
    s_cbranch_scc0 P_nw
    """)
    write_hold(g)
    g(f"""
    P_nw:
    s_bitcmp1_b32 s53, 6
    s_cbranch_scc0 P_next
    """)
    for r in range(72): g(f"v_mov_b32 v{PA+r}, 0")
    g("P_next:")
    for o in advs(addrs): g(o)
    fetch(g)
    g(f"""
    s_waitcnt lgkmcnt(0)
    s_branch P_disp
    P_end:
    """)
    stamp(g)
    for m in omfma(1): g(m)
    KEEP = PF; RX = 0
    g(f"""
    v_lshlrev_b32 v{PT}, 4, {LANE}
    s_and_b32 s48, s2, 0xfc
    s_lshl_b32 s48, s48, 17
    s_lshl_b32 s49, s50, 15
    s_add_u32 s48, s48, s49
    s_lshl_b32 s49, s46, 13
    s_add_u32 s48, s48, s49
    s_add_u32 s48, s48, {POFF}
    """)
    XB = OPT['xbf']
    for gi in range(4):
        tiles = list(range(8 * gi, min(8 * gi + 8, 30)))
        g(f"""
        s_cmp_eq_u32 s50, {gi}
        s_cbranch_scc1 P_keep{gi}
        s_add_u32 s53, s48, {gi << 17}
        s_add_u32 s54, s53, 4096
        """)
        if XB:
            for i in range(len(tiles) // 2):
                a = PA + 4 * tiles[2 * i]
                d = 152 + 4 * ((4 * gi + i) % 8)
                for k in range(4): g(f"v_cvt_pk_bf16_f32 v{d+k}, v{a+2*k}, v{a+2*k+1}")
                g(f"buffer_store_dwordx4 {vr(d,4)}, v{PT}, {SRD_WS}, s53 offen offset:{1024*i} {OPT['pst']}")
        else:
            for i, t in enumerate(tiles):
                g(f"buffer_store_dwordx4 {vr(PA+4*t,4)}, v{PT}, {SRD_WS}, {'s53' if i < 4 else 's54'} offen offset:{1024*(i%4)} {OPT['pst']}")
        g(f"P_kr{gi}:")
        ool(f"P_keep{gi}:")
        for i, t in enumerate(tiles):
            for k in range(4): ool(f"v_mov_b32 v{KEEP+4*i+k}, v{PA+4*t+k}")
        ool(f"s_branch P_kr{gi}")
    g(f"""
    v_and_b32 v{PT+2}, 15, {LANE}
    v_mul_u32_u24 v{PT+2}, 2560, v{PT+2}
    v_lshrrev_b32 v{PT+3}, 4, {LANE}
    v_lshl_add_u32 v{PT+2}, v{PT+3}, 3, v{PT+2}
    v_and_b32 v{PT+3}, 3, {LANE}
    s_and_b32 s53, s2, 0xfc
    v_add_u32 v{PT+1}, s53, v{PT+3}
    v_lshlrev_b32 v{PT+1}, 10, v{PT+1}
    v_lshlrev_b32 v{PT+3}, 2, v{PT+3}
    v_mov_b32 v{PW}, 1
    s_lshl_b32 s49, s46, 7
    s_lshl_b32 s57, s50, 2
    s_add_u32 s57, s57, s49
    s_add_u32 s57, s57, {FLOFF + 512}
    s_lshl_b32 s58, s2, 10
    s_add_u32 s58, s58, s49
    s_add_u32 s58, s58, {FLOFF + 512}
    s_lshl_b32 s48, s2, 17
    s_lshl_b32 s49, s46, 13
    s_add_u32 s48, s48, s49
    s_add_u32 s48, s48, {POFF}
    s_lshl_b32 s59, 1, s50
    s_waitcnt vmcnt(0)
    s_mov_b64 exec, 15
    buffer_store_dword v{PW}, v{PT+1}, {SRD_WS}, s57 offen sc1
    s_mov_b64 exec, -1
    """)
    stamp(g)
    NL = 4 if XB else 8
    g(f"""
    P_xs:
    buffer_load_dword v{PW+1}, v{PT+3}, {SRD_WS}, s58 offen sc1
    s_waitcnt vmcnt(0)
    v_cmp_eq_u32 vcc, 1, v{PW+1}
    s_andn2_b32 s60, vcc_lo, s59
    s_and_b32 s60, s60, 15
    s_cbranch_scc1 P_xg
    s_sleep {OPT['slp']}
    s_branch P_xs
    P_xg:
    s_or_b32 s59, s59, s60
    """)
    for k in range(4):
        g(f"""
        s_bitcmp1_b32 s60, {k}
        s_cbranch_scc0 P_xl{k}
        s_add_u32 s53, s48, {k << 15}
        s_add_u32 s54, s53, 4096
        """)
        for i in range(NL):
            g(f"buffer_load_dwordx4 {vr(RX + 4*NL*k + 4*i, 4)}, v{PT}, {SRD_WS}, {'s53' if i < 4 else 's54'} offen offset:{1024*(i%4)} {OPT['pld']}")
        g(f"P_xl{k}:")
    g(f"""
    s_cmp_lg_u32 s59, 15
    s_cbranch_scc1 P_xs
    s_lshl_b32 s48, s43, 1
    s_lshr_b32 s49, s46, 1
    s_add_u32 s48, s48, s49
    s_mul_i32 s48, s48, {96*2560}
    s_mul_i32 s49, s38, 1280
    s_add_u32 s48, s48, s49
    s_mul_i32 s49, s39, 320
    s_add_u32 s48, s48, s49
    s_and_b32 s49, s46, 1
    s_mul_i32 s49, s49, 160
    s_add_u32 s48, s48, s49
    s_lshl_b32 s55, s50, 3
    s_waitcnt vmcnt(0)
    """)
    assert XB
    for k in range(4):
        g(f"s_cmp_eq_u32 s50, {k}\ns_cbranch_scc1 P_xa{k}")
        for r in range(32):
            src = RX + 4 * NL * k + r // 2
            tmp = PW + (r & 3)
            g(f"v_and_b32 v{tmp}, 0xffff0000, v{src}" if r & 1 else f"v_lshlrev_b32 v{tmp}, 16, v{src}")
            g(f"v_add_f32 v{KEEP+r}, v{KEEP+r}, v{tmp}")
        g(f"P_xa{k}:")
    for i in range(8):
        if i == 6: g("s_cmp_eq_u32 s50, 3\ns_cbranch_scc1 P_fin")
        g(f"""
        s_mul_i32 s49, s55, 52
        s_lshr_b32 s49, s49, 8
        s_mul_i32 s53, s49, 5
        s_sub_u32 s53, s55, s53
        s_mul_i32 s49, s49, {16*2560}
        s_lshl_b32 s53, s53, 5
        s_add_u32 s53, s53, s49
        s_add_u32 s53, s53, s48
        s_add_u32 s55, s55, 1
        v_cvt_pk_bf16_f32 v{PH+2*i}, v{KEEP+4*i}, v{KEEP+4*i+1}
        v_cvt_pk_bf16_f32 v{PH+2*i+1}, v{KEEP+4*i+2}, v{KEEP+4*i+3}
        buffer_store_dwordx2 {vr(PH+2*i,2)}, v{PT+2}, {SRD_OUT}, s53 offen {OPT.get('outp', '')}
        """)
    g("P_fin:")
    fin(g)
    g.ext(ool.L)

def build():
    S = schedule()
    if "-s" in sys.argv:
        for i, s in enumerate(S.steps): print(i, s, file=sys.stderr)
        print("waits", S.waits, file=sys.stderr)
    g = G()
    common(g)
    attention(g)
    loader(g, S)
    proj(g, S)
    g("L_end:\ns_endpgm")
    if OPT.get('nomfma'):
        k = 0
        for i, l in enumerate(g.L):
            if "v_mfma" in l and not l.rstrip().endswith(", 0"):
                k += 1
                if k % OPT['nomfma'] == 0: g.L[i] = "    s_nop 1"
    if OPT.get('fake16'):
        import re
        out = []; k = 0
        for l in g.L:
            m = re.match(r"\s*v_mfma_f32_32x32x16_bf16 v\[(\d+):\d+\], (\S+), (\S+), (\S+)", l)
            if m and m.group(4) != "0":
                d = int(m.group(1)); k += 1
                for q in range(2):
                    r = d + 4 * ((2 * (k // 1) + q + 2 * (k // 6)) % 4)
                    out.append(f"    v_mfma_f32_16x16x32_bf16 v[{r}:{r+3}], {m.group(2)}, {m.group(3)}, v[{r}:{r+3}]")
            else: out.append(l)
        g.L = out
    lines, n = fix_hazards(g.L, verbose="-v" in sys.argv)
    print("nop states inserted:", n, " lines:", len(lines), "steps", len(S.steps), file=sys.stderr)
    lines.append(".p2align 8")
    lines.append(".type L_table,@object")
    lines.append("L_table:")
    for f in S.tab:
        for i in range(0, 128, 8):
            lines.append("    .long " + ", ".join("0x%x" % x for x in f[i:i+8]))
    lines.append("L_tabend:")
    lines.append(".size L_table, %d" % (len(S.tab) * 512))
    return wrap(["@launch grid=(256,1,1) block=(512,1,1) lds=163840"], [(NAME + "_kernel", "\n".join(lines) + "\n", 256, 102, 256)])

if __name__ == "__main__":
    out = sys.argv[1]
    if "--stamps" in sys.argv: STAMPS = True
    for a in sys.argv:
        if a.startswith("--o:"):
            k, v = a[4:].split("=")
            OPT[k] = v.replace("+", " ") if not v.lstrip("-").isdigit() else int(v)
    open(out, "w").write(build())
```

```python
import sys, math, struct
from asmlib import *
from isa import *

KV_SLOT = 24576
PB0 = 73728
PBSZ = 45056
PB1 = PB0 + PBSZ
XQ = 36864
XO = 0
UNIT = 36864
QOFF = 32 * 4 * 8 * UNIT
TSOFF = QOFF + 256 * 5 * UNIT
WS_BYTES = 438042624
FLOFF = QOFF
POFF = QOFF + (1 << 20)
CSC = (192 ** -0.5) * math.log2(math.e)
def fbits(x): return "0x%08x" % struct.unpack("<I", struct.pack("<f", x))[0]

SRD_K, SRD_V, SRD_WQ, SRD_WO, SRD_X, SRD_WS, SRD_OUT, SRD_DBG = [f"s[{4*i+4}:{4*i+7}]" for i in range(8)]
LANE = "v255"
STAMPS = False
OPT = dict(ost='sc1 nt', p1='nt', p2='sc1', D=3, slp=8, fine=1, thr=8, pa=0, pp=0, pl=3, la2=1, lead=6, DW=6, DO=5, q1pre=5, pst='sc1 nt', pld='nt', obp=0, noot=0, nox=1, xbf=1, ost3='sc1', split=0, selfld=0, r1=0, r2=3, cpf=1, dyn=1, w3=72, pair=0, bt=0, outp='sc1')

class G:
    def __init__(self): self.L = []
    def __call__(self, s):
        for l in s.strip("\n").split("\n"):
            l = l.strip()
            if not l: continue
            self.L.append(l if l.endswith(":") else "    " + l)
    def ext(self, lines): self.L += lines

def vr(b, n=1): return f"v{b}" if n == 1 else f"v[{b}:{b+n-1}]"

def emit_f(g, dst, row, tmp):
    g(f"""
    v_lshlrev_b32 {tmp}, 1, {row}
    v_and_b32 {tmp}, 4, {tmp}
    v_bfe_u32 {dst}, {row}, 2, 2
    v_or_b32 {dst}, {dst}, {tmp}
    """)
def div3(g, dst, src):
    g(f"v_mul_u32_u24 {dst}, 171, {src}\nv_lshrrev_b32 {dst}, 9, {dst}")

_sl = [0]
def _st(g, idx, lo, hi):
    _sl[0] += 1
    n = _sl[0]
    g(f"""
    s_memtime s[96:97]
    s_waitcnt lgkmcnt(0)
    s_lshl_b64 exec, 1, {idx}
    s_cmp_ge_u32 {idx}, 64
    s_cbranch_scc1 ST_hi{n}
    v_mov_b32 v{lo}, s96
    s_branch ST_e{n}
    ST_hi{n}:
    v_mov_b32 v{hi}, s96
    ST_e{n}:
    s_mov_b64 exec, -1
    """)
def stamp(g):
    if not STAMPS or OPT.get('lite'): return
    _st(g, "s98", 253, 254)
    g("s_add_u32 s98, s98, 1")
def fstamp(g, k):
    if not STAMPS or not OPT['fine'] or OPT.get('lite'): return
    g("s_sub_u32 s95, s98, 1")
    _st(g, "s95", 240 + 2 * k, 241 + 2 * k)
def mark(g, k):
    if not STAMPS or OPT.get('lite'): return
    g(f"""
    s_memtime s[96:97]
    s_waitcnt lgkmcnt(0)
    v_writelane_b32 v254, s96, {40 + k}
    """)
def ffin(g):
    if not STAMPS: return
    g(f"""
    s_mul_i32 s95, s2, 1536
    s_add_u32 s95, s95, {TSOFF + 1048576}
    v_lshlrev_b32 v252, 2, {LANE}
    """)
    for k in range(6):
        g(f"buffer_store_dword v{240+k}, v252, {SRD_WS}, s95 offen offset:{256*k}")
def bar(g):
    stamp(g)
    g("s_barrier")
def fin(g):
    if STAMPS:
        stamp(g)
        g(f"""
        s_memrealtime s[96:97]
        s_waitcnt lgkmcnt(0)
        v_writelane_b32 v254, s96, 63
        v_writelane_b32 v254, s100, 62
        v_writelane_b32 v254, s99, 61
        s_lshl_b32 s98, s2, 3
        s_add_u32 s98, s98, s3
        s_lshl_b32 s98, s98, 9
        s_add_u32 s98, s98, {TSOFF}
        v_lshlrev_b32 v252, 2, {LANE}
        buffer_store_dword v253, v252, {SRD_WS}, s98 offen
        buffer_store_dword v254, v252, {SRD_WS}, s98 offen offset:256
        """)
    g("s_endpgm")

NT = 92
H_TICKS = (10, 26, 42, 58)
def chunk_offs(c):
    if c < 40:
        return (c // 10) * 768 + (c % 10) * 64 * 12288, (c % 10) * 128
    j = c - 40; r = j // 12; jj = j % 12; ee = jj & 1; ks = jj >> 1
    return ((2 * r + ee) * 192 + 32 * ks) * 1280, (r * 4 + 2 * ee) * UNIT + ks * 6144
NQI, NOI = 36, 22
NLF = 10

class Sched: pass
def schedule():
    S = Sched()
    la2 = OPT['la2']; D = OPT['D']; DW = OPT['DW']; DO = OPT['DO']
    SIG0 = 30 if OPT['split'] else 28
    chunk_of = {}; c = 0
    for T in range(NT):
        if T in H_TICKS: continue
        chunk_of[T] = c; c += 1
    assert c == 88
    tick_of = {v: k for k, v in chunk_of.items()}
    buf = {}
    for T in range(NT + 1):
        buf[T] = PB1 if T & 1 else PB0
    if la2:
        for T in range(10): buf[T] = [PB1, PB0, XQ][T % 3]
        for T in range(76, NT + 1): buf[T] = [PB0, XO, PB1][(T - 76) % 3]
    issue = {}
    for T in chunk_of:
        issue[T] = T - 1
        if la2 and (T <= 9 or T >= 77): issue[T] = max(T - 2, -1)
    iss = lambda c: issue[tick_of[c]]
    tch = {T: {} for T in range(NT)}
    def add(T, k, off): tch[T].setdefault(k, []).append(off)
    def place(kind, items):
        nxt = 10 ** 9
        res = []
        for late, early, off in reversed(items):
            t = min(late, nxt - 1);
            res.append((max(t, early), off)); nxt = t
        prev = -1
        for t, off in reversed(res):
            t = max(t, prev + 1) if t <= prev else t
            add(t, kind, off); prev = t
    if not OPT['nox']: place("x", [(iss(c) - D, 8, chunk_offs(c)[1]) for c in range(10, 40)])
    if not OPT.get('noq'): place("q", [(iss(c) - DW, 8, chunk_offs(c)[0]) for c in range(10 + OPT.get('q1pre', 4), 40)])
    if not OPT.get('noq'): place("w", [(min(iss(40 + 2 * k) - DW, OPT['w3']), 8, chunk_offs(40 + 2 * k)[0]) for k in range(24)])
    if not OPT['noot']: place("o", [(iss(40 + 12 * r + (k & ~1)) - DO, SIG0 + 16 * r, r * 4 * UNIT + k * 3072) for r in range(3) for k in range(12)])
    chk = {iss(40 + 12 * r) - 1: r for r in range(4)}
    for t, r in chk.items(): assert t >= (SIG0 + 16 * r if r < 3 else 75)
    steps = []
    for T in range(NT):
        st = []
        for c in sorted(chunk_of[t] for t in chunk_of if issue[t] == T): st.append(dict(chunk=c))
        if T == 70: st[0]["ob"] = 1
        if not st: st.append(dict())
        n = max([len(v) for v in tch[T].values()], default=0)
        assert n <= 1, (T, tch[T])
        for k, v in tch[T].items(): st[-1]["t" + k] = v[0]
        n = T - 8
        if 0 <= n <= 64: st[-1]["kv"] = n
        if T in (SIG0, SIG0 + 16, SIG0 + 32):
            st[0]["sig"] = 1
            if OPT['bt']: st[-1]["bt"] = 1
        if T == 24: st[0]["rdy"] = 1; st[-1]["rchk"] = 1
        if 11 <= T <= 18: st[-1]["rs"] = T - 11
        if T in chk: st[0]["poll"] = 1; st[-1]["chk"] = 1
        st[-1]["last"] = 1
        st[0]["first"] = 1
        for s in st: s["tick"] = T
        steps += st
    q = []
    S.pre_chunks = [chunk_of[T] for T in sorted(chunk_of) if issue[T] == -1]
    for c in S.pre_chunks: q += [("c", c)] * NQI
    S.pre_wait = NQI * (len(S.pre_chunks) - 1)
    for s in steps:
        T = s["tick"]
        if s.get("sig"): q.append(("x",))
        if s.get("rdy") or s.get("poll"): q.append(("p", T))
        if "chunk" in s: q += [("c", s["chunk"])] * (NQI if s["chunk"] < 40 else NOI)
        q += [("x",)] * (("rs" in s) + ("tx" in s) + (1 + OPT['pair']) * (("tq" in s) + ("tw" in s) + ("to" in s)))
        if s.get("bt"): q += [("x",)] * 5
        if "kv" in s:
            n = s["kv"]; q += [("k", n)] * (12 * ((n < 64) + (n >= 1)))
        if s.get("last"):
            need = {("p", T), ("k", T + 1 - 10)}
            if T + 1 in chunk_of: need.add(("c", chunk_of[T + 1]))
            last = max([i for i, t in enumerate(q) if t in need], default=-1)
            s["wait"] = min(len(q) - 1 - last, 63)
            q = q[last + 1:]
        keys = set(s) - {"tick", "wait"}
        s["kind"] = 0
        if keys == {"chunk", "first", "last"}:
            n = NQI if s["chunk"] < 40 else NOI
            if s["wait"] >= n: s["kind"] = 1 if s["chunk"] < 40 else 2
    S.steps = steps; S.buf = buf; S.chunk_of = chunk_of; S.tick_of = tick_of; S.issue = issue
    from collections import Counter
    cnt = Counter(s["wait"] for s in steps if s.get("last") and not s["kind"])
    S.waits = [w for w, _ in cnt.most_common()]
    assert len(S.waits) <= 16
    tab = [[0] * 128 for _ in range(NLF + 2)]
    assert len(steps) < 128, len(steps)
    for i, s in enumerate(steps):
        fl = 0
        if "chunk" in s:
            c = s["chunk"]; fl |= 1 if c < 40 else 2
            tab[1][i], tab[2][i] = chunk_offs(c if not OPT.get('fix') else (c % 10 if c < 40 else 40 + (c & 1)))
            tab[3][i] = buf[tick_of[c]]
        if "kv" in s:
            n = s["kv"]
            if n < 64: fl |= 4; tab[4][i] = (n >> 4) * 2 * 196608 + (n & 15) * 12288
            if n >= 1: fl |= 8; m = n - 1; tab[5][i] = (m >> 4) * 2 * 196608 + (m & 15) * 12288
            fl |= (n % 3) << 20
        for b, k in enumerate(("tx", "tq", "tw", "to")):
            if k in s: fl |= 16 << b; tab[6 + b][i] = s[k]
        if s.get("sig"): fl |= 1 << 8
        if s.get("rdy"): fl |= 1 << 9
        if s.get("poll"): fl |= 1 << 10
        if s.get("rchk"): fl |= 1 << 11
        if s.get("chk"): fl |= 1 << 12
        if s.get("last"):
            fl |= 1 << 13
            if not s["kind"]: fl |= S.waits.index(s["wait"]) << 16
        if s.get("ob"): fl |= 1 << 14
        if s.get("first"): fl |= 1 << 15
        if "rs" in s: fl |= 1 << 22
        if s.get("bt"): fl |= 1 << 23
        fl |= s["kind"] << 24
        tab[0][i] = fl
    tab[0][len(steps)] = 3 << 24
    for T in range(NT):
        fl = 0
        ty = lambda t: 0 if t not in chunk_of else (1 if chunk_of[t] < 40 else 2)
        fl |= ty(T)
        prev = chunk_of.get(T - 1)
        if prev is not None and prev < 40 and prev % 10 == 9 and T != 10: fl |= 4
        if T + 1 in H_TICKS: fl |= 8 if T == 9 else 128
        if T == 9: fl |= 16
        if ty(T) == 1 and chunk_of[T] % 10 == 0: fl |= 32
        if prev == 39: fl |= 64
        pend = ty(T - 1) if T != 10 else 0
        fl |= pend << 8
        if fl == 0x101: fl |= 1 << 16
        if fl == 0x202: fl |= 2 << 16
        tab[NLF][T] = fl
        tab[NLF + 1][T] = (buf[T + 1] - buf[T]) & 0xffffffff
    tab[NLF][NT] = 3 << 16
    S.tab = tab
    return S

def load_table(g, fields, dst):
    _sl[0] += 1
    n = _sl[0]
    g(f"""
    s_getpc_b64 s[64:65]
    TB_{n}:
    s_add_u32 s64, s64, L_table-TB_{n}
    s_addc_u32 s65, s65, 0
    v_lshlrev_b32 v1, 2, {LANE}
    """)
    hi = False
    for k, f in enumerate(fields):
        if f >= 8 and not hi:
            g(f"v_add_u32 v1, 4096, v1"); hi = True
        o = (f % 8) * 512
        g(f"global_load_dword v{dst+2*k}, v1, s[64:65] offset:{o}\nglobal_load_dword v{dst+2*k+1}, v1, s[64:65] offset:{o+256}")

def common(g):
    g(f"""
    s_cmp_ge_u32 s2, 256
    s_cbranch_scc1 L_end
    s_load_dwordx16 s[64:79], s[0:1], 0
    s_load_dwordx8 s[80:87], s[0:1], 64
    s_load_dwordx2 s[88:89], s[0:1], 96
    """)
    if STAMPS: g("s_mov_b32 s98, 0\ns_memrealtime s[100:101]\ns_memtime s[96:97]")
    if OPT['cpf']:
        g(f"""
        s_getpc_b64 s[90:91]
        L_pc0:
        s_lshr_b32 s41, s2, 3
        s_lshl_b32 s41, s41, 3
        v_add_u32 v1, s41, v0
        v_lshlrev_b32 v1, 7, v1
        v_min_u32 v1, L_tabend-L_pc0-4, v1
        v_cmp_gt_u32 vcc, 8, v0
        s_and_saveexec_b64 s[92:93], vcc
        s_cbranch_execz L_nopf
        global_load_dword v101, v1, s[90:91]
        L_nopf:
        s_mov_b64 exec, s[92:93]
        """)
    g(f"""
    v_lshrrev_b32 v1, 6, v0
    v_and_b32 {LANE}, 63, v0
    s_and_b32 s40, s2, 7
    v_readfirstlane_b32 s3, v1
    s_lshr_b32 s41, s2, 3
    s_lshr_b32 s38, s40, 2
    s_and_b32 s50, s40, 3
    s_lshr_b32 s51, s41, 4
    s_lshl_b32 s36, s50, 3
    s_add_u32 s36, s36, s51
    s_and_b32 s37, s41, 15
    s_lshl_b32 s39, s51, 1
    s_and_b32 s44, s41, 1
    s_add_u32 s39, s39, s44
    s_lshr_b32 s43, s37, 1
    s_lshl_b32 s42, s40, 3
    s_add_u32 s42, s42, s43
    s_mov_b32 s6, {16*32*196608}
    s_mov_b32 s7, 0x20000
    s_mov_b32 s10, {16*32*196608}
    s_mov_b32 s11, 0x20000
    s_mov_b32 s14, {640*6144*2}
    s_mov_b32 s15, 0x20000
    s_mov_b32 s18, {640*6144*2}
    s_mov_b32 s19, 0x20000
    s_mov_b32 s22, {16*96*640*2}
    s_mov_b32 s23, 0x20000
    s_mov_b32 s26, {WS_BYTES}
    s_mov_b32 s27, 0x20000
    s_mov_b32 s30, {16*96*1280*2}
    s_mov_b32 s31, 0x20000
    s_mov_b32 s34, 256
    s_mov_b32 s35, 0x20000
    s_waitcnt lgkmcnt(0)
    s_cmp_eq_u32 s38, 0
    s_cselect_b32 s20, s64, s74
    s_cselect_b32 s21, s65, s75
    s_cselect_b32 s4, s66, s76
    s_cselect_b32 s5, s67, s77
    s_cselect_b32 s8, s68, s78
    s_cselect_b32 s9, s69, s79
    s_cselect_b32 s12, s70, s80
    s_cselect_b32 s13, s71, s81
    s_cselect_b32 s16, s72, s82
    s_cselect_b32 s17, s73, s83
    s_mov_b32 s28, s84
    s_mov_b32 s29, s85
    s_mov_b32 s32, s86
    s_mov_b32 s33, s87
    s_mov_b32 s24, s88
    s_mov_b32 s25, s89
    """)
    if STAMPS: g("s_mov_b32 s99, s96")
    g(f"""
    s_cmp_eq_u32 s3, 3
    s_cbranch_scc1 L_loader
    s_cmp_ge_u32 s3, 4
    s_cbranch_scc1 L_proj
    """)

O_ = 0; Q_ = 96; S_ = 144; P_ = 160; F_ = 168; NF = 8
E_ = 200
EQ = [200, 204, 208, 212, 216, 220, 242, 246]
KC = 224; VC = 228
VM, VMC, VTHR, VL, VMAX, T0, T1, T2, VQOFF, VOOFF = [f"v{i}" for i in range(232, 242)]

def pv_of(j, dm):
    return (j % 2, j // 2) if dm else (j // 6, j % 6)
def frag_read(j, dm=False):
    b = F_ + 4 * (j % NF)
    if j >= 12:
        s = j - 12
        return [f"ds_read_b128 {vr(b,4)}, v{KC + (s & 3)} offset:{128 * (s >> 2)}"]
    t, dt = pv_of(j, dm)
    off = 16 * 384 * t + 128 * (dt >> 1)
    return [f"ds_read_b64_tr_b16 {vr(b + 2*u, 2)}, v{VC + 2*u + (dt & 1)} offset:{off}" for u in range(2)]

def mfma_att(j, dm=False):
    b = F_ + 4 * (j % NF)
    if j >= 12:
        s = j - 12
        c = "0" if s == 0 else vr(S_, 16)
        return f"v_mfma_f32_32x32x16_bf16 {vr(S_,16)}, {vr(b,4)}, {vr(Q_+4*s,4)}, {c}"
    t, dt = pv_of(j, dm)
    return f"v_mfma_f32_32x32x16_bf16 {vr(O_+16*dt,16)}, {vr(b,4)}, {vr(P_+4*t,4)}, {vr(O_+16*dt,16)}"

def softmax_ops():
    s = S_
    ops = []
    fma = lambda e: f"v_fma_f32 v{s+e}, v{s+e}, s46, -{VMC}"
    ex = lambda e: f"v_exp_f32 v{s+e}, v{s+e}"
    add = lambda e: f"v_add_f32 {VL}, {VL}, v{s+e}"
    cvt = lambda i: f"v_cvt_pk_bf16_f32 v{P_+i}, v{s+2*i}, v{s+2*i+1}"
    for k in range(19):
        if k < 16: ops.append(fma(k))
        if 0 <= k - 1 < 16: ops.append(ex(k - 1))
        if 0 <= k - 3 < 16:
            if (k - 3) & 1: ops.append(cvt((k - 3) >> 1))
    adds = [add(e) for e in range(16)]
    return ops, adds

def max_ops():
    s = S_
    ops = [f"v_max3_f32 {VMAX}, v{s}, v{s+1}, v{s+2}", f"v_max3_f32 {T0}, v{s+3}, v{s+4}, v{s+5}"]
    r = [VMAX, T0]
    for k in range(5): ops.append(f"v_max3_f32 {r[k&1]}, {r[k&1]}, v{s+6+2*k}, v{s+7+2*k}")
    ops.append(f"v_max_f32 {VMAX}, {VMAX}, {T0}")
    return ops

def addr_adv():
    ops = [f"v_add_u32 v{KC+i}, s49, v{KC+i}" for i in range(8)]
    return ops
def slot_adv(g):
    g(f"""
    s_add_u32 s48, s48, 1
    s_cmp_eq_u32 s48, 3
    s_cselect_b32 s48, 0, s48
    s_cselect_b32 s49, {(-2*KV_SLOT) & 0xffffffff}, s45
    """)

def q_reads():
    return [f"ds_read_b128 {vr(Q_+4*s,4)}, {VQOFF} offset:{1024*s}" for s in range(12)]

def zero_O(g):
    for i in range(4): g(f"v_mov_b32 v{P_+i}, 0")
    for dt in range(6):
        g(f"v_mfma_f32_32x32x16_bf16 {vr(O_+16*dt,16)}, {vr(P_,4)}, {vr(P_,4)}, 0")
def reset_state(g):
    g(f"""
    v_mov_b32 {VM}, 0xff800000
    v_mov_b32 {VTHR}, 0xff800000
    v_mov_b32 {VMC}, 0
    v_mov_b32 {VL}, 0
    s_mov_b32 s57, 1
    """)

def att_tick(g, mode, rare, ost=None):
    LEAD = OPT['lead']
    dm = mode != "norm"
    bar(g)
    h = G()
    for j in range(LEAD):
        for r in frag_read(j, dm): h(r)
    slot_adv(h)
    for o in max_ops(): h(o)
    h(f"v_cmp_gt_f32 vcc, {VMAX}, {VTHR}")
    lab = f"A_rare{len(rare)}"
    rare.append(lab)
    h(f"s_cbranch_vccnz {lab}\n{lab}_ret:")
    sm, adds = softmax_ops()
    for o in sm: h(o)
    if OPT['dyn'] and not dm: h("s_setprio 0")
    fill = adds
    qr = q_reads() if mode == "t15" else []
    NM = 12 if mode == "last" else 24
    epi = {}
    if dm:
        fill = fill + [f"v_mov_b32 {T0}, {VL}", f"v_mov_b32 {T1}, {VL}", "s_mov_b32 s53, s54", f"s_add_u32 s54, s54, {4*UNIT}",
                f"v_permlane32_swap_b32 {T0}, {T1}", f"v_add_f32 {T0}, {T0}, {T1}", f"v_rcp_f32 {T1}, {T0}"]
        for dt in range(6):
            o = O_ + 16 * dt
            for e in range(2):
                k = 2 * dt + e
                d = EQ[k % 8]
                rs = [o + 4*e, o + 4*e + 2, o + 8 + 4*e, o + 8 + 4*e + 2]
                ops = [f"v_pk_mul_f32 {vr(r,2)}, {vr(r,2)}, v[238:239] op_sel_hi:[1,0]" for r in rs]
                ops += [f"v_cvt_pk_bf16_f32 v{d+i}, v{r}, v{r+1}" for i, r in enumerate(rs)]
                ops.append(f"buffer_store_dwordx4 {vr(d,4)}, {VOOFF}, {SRD_WS}, s53 offen offset:{512*e} {ost}")
                if e: ops.append("s_add_u32 s53, s53, 6144")
                epi[k + 3] = ops
    adv = addr_adv()
    for j in range(NM):
        h(mfma_att(j, dm))
        if j + LEAD < NM:
            for r in frag_read(j + LEAD, dm): h(r)
        if qr and j < 12: h(qr.pop(0))
        n = 8 if dm else 3
        for o in fill[:n]: h(o)
        fill = fill[n:]
        if j in epi:
            assert not fill
            for o in epi.pop(j): h(o)
        if j >= 12: assert not fill
        if j + LEAD >= 24 and adv:
            for o in adv[:2]: h(o)
            adv = adv[2:]
    if mode == "last":
        bar(h)
        for j in sorted(epi):
            for o in epi[j]: h(o)
        bar(h)
        adv = []; epi = {}
    assert not adv and not epi and not qr
    if OPT['dyn'] and not dm: h("s_setprio 2")
    g.ext(add_lgkm(h.L))

def rare_path(g, lab):
    g(f"""
    {lab}:
    v_mov_b32 {T0}, {VMAX}
    v_mov_b32 {T1}, {VMAX}
    v_permlane32_swap_b32 {T0}, {T1}
    v_max3_f32 {T0}, {T0}, {T1}, {VM}
    v_sub_f32 {T1}, {VM}, {T0}
    v_mul_f32 {T1}, s46, {T1}
    v_exp_f32 {T1}, {T1}
    v_mov_b32 {VM}, {T0}
    v_mul_f32 {VMC}, s46, {T0}
    v_add_f32 {VTHR}, s47, {T0}
    s_cmp_eq_u32 s57, 1
    s_mov_b32 s57, 0
    s_cbranch_scc1 {lab}_ret
    v_mul_f32 {VL}, {VL}, {T1}
    """)
    for r in range(96): g(f"v_mul_f32 v{O_+r}, v{O_+r}, {T1}")
    g(f"s_branch {lab}_ret")

def attention(g):
    LEAD = OPT['lead']
    mark(g, 0)
    def wqpat(dst, src):
        g(f"""
        v_mul_u32_u24 v2, 171, {src}
        v_lshrrev_b32 v2, 9, v2
        v_mul_u32_u24 v3, 3, v2
        v_sub_u32 v3, {src}, v3
        v_lshrrev_b32 v4, 2, v2
        v_and_b32 v2, 3, v2
        v_lshl_add_u32 v2, v4, 6, v2
        v_add_u32 v2, s52, v2
        v_mul_u32_u24 v2, 12288, v2
        v_lshl_add_u32 {dst}, v3, 7, v2
        """)
    g(f"""
    s_lshr_b32 s53, s41, 4
    s_mul_i32 s53, s53, 48
    v_min_u32 v5, 47, {LANE}
    v_add_u32 v1, s53, v5
    v_mul_u32_u24 v108, 1280, v1
    s_mul_i32 s60, s37, 122880
    s_lshl_b32 s52, s3, 9
    s_add_u32 s60, s60, s52
    s_mul_i32 s53, s3, 48
    v_add_u32 v1, s53, v5
    v_min_u32 v1, 119, v1
    s_lshl_b32 s52, s37, 2
    s_mul_i32 s61, s36, 384
    """)
    wqpat("v107", "v1")
    g(f"""
    s_cmp_lg_u32 s3, 0
    s_cbranch_scc1 A_tr0
    buffer_load_dword v100, v108, {SRD_X}, s60 offen
    buffer_load_dword v100, v107, {SRD_WQ}, s61 offen
    buffer_load_dword v100, v108, {SRD_X}, s60 offen offset:128
    buffer_load_dword v100, v108, {SRD_X}, s60 offen offset:256
    buffer_load_dword v100, v108, {SRD_X}, s60 offen offset:384
    A_tr0:
    v_min_u32 v1, {12 * OPT.get('q1pre', 4) - 1}, {LANE}
    """)
    wqpat("v109", "v1")
    g(f"""
    v_mov_b32 v102, 0
    v_mov_b32 v103, 0
    v_mov_b32 v104, 0
    v_mov_b32 v105, 0
    v_lshlrev_b32 v106, 4, {LANE}
    s_lshl_b32 s62, s2, 10
    s_add_u32 s62, s62, {FLOFF}
    s_cmp_eq_u32 s3, 1
    s_cselect_b32 s63, {OPT['r1']}, {OPT['r2']}
    s_cmp_eq_u32 s3, 0
    s_cselect_b32 s63, 100, s63
    """)
    mark(g, 1)
    g(f"""
    s_setprio {2 if OPT['dyn'] else OPT['pa']}
    s_mov_b32 s46, {fbits(CSC)}
    s_mov_b32 s47, {fbits(OPT['thr'] / CSC)}
    s_mov_b32 s45, {KV_SLOT}
    s_mov_b32 s48, 0
    s_mul_i32 s52, s3, 12288
    s_add_u32 s52, s52, {PB0}
    s_lshl_b32 s54, s42, 4
    s_add_u32 s54, s54, s39
    s_mul_i32 s54, s54, {UNIT}
    s_lshl_b32 s53, s3, 11
    s_add_u32 s54, s54, s53
    v_lshlrev_b32 {VQOFF}, 4, {LANE}
    v_add_u32 {VQOFF}, s52, {VQOFF}
    v_and_b32 v1, 31, {LANE}
    v_lshrrev_b32 v2, 5, {LANE}
    v_mul_u32_u24 v3, 384, v1
    """)
    emit_f(g, "v4", "v1", "v5")
    for v in range(4):
        g(f"""
        v_add_u32 v5, {2*v}, v2
        v_xor_b32 v5, v5, v4
        v_lshl_add_u32 v{KC+v}, v5, 4, v3
        """)
    g(f"""
    v_lshrrev_b32 v5, 4, v1
    v_lshlrev_b32 v5, 10, v5
    v_and_b32 v6, 15, v1
    v_lshl_add_u32 v6, v2, 4, v6
    v_lshl_add_u32 {VOOFF}, v6, 4, v5
    v_bfe_u32 v5, {LANE}, 4, 1
    v_bfe_u32 v6, {LANE}, 2, 2
    v_bfe_u32 v7, {LANE}, 1, 1
    v_and_b32 v8, 1, {LANE}
    v_lshl_add_u32 v9, v2, 2, v6
    v_mul_u32_u24 v9, 384, v9
    v_lshl_add_u32 v9, v8, 3, v9
    v_lshl_add_u32 v10, v5, 1, v7
    v_bfe_u32 v11, {LANE}, 3, 1
    v_lshl_add_u32 v11, v11, 2, v2
    """)
    for u in range(2):
        for e in range(2):
            g(f"""
            v_add_u32 v12, {4*e}, v10
            v_add_u32 v13, {2*u}, v11
            v_xor_b32 v12, v12, v13
            v_lshl_add_u32 v12, v12, 4, v9
            v_add_u32 v{VC + 2*u + e}, {12288 + 8*384*u}, v12
            """)
    zero_O(g)
    reset_state(g)
    g("s_mov_b32 s55, 0\nA_idle:")
    bar(g)
    g(f"""
    s_cmp_eq_u32 s55, s63
    s_cbranch_scc1 A_touch
    A_tr1:
    s_add_u32 s55, s55, 1
    s_cmp_lt_u32 s55, 10
    s_cbranch_scc1 A_idle
    s_waitcnt vmcnt(0)
    """)
    bar(g)
    b = G()
    qr = q_reads()
    for j in range(12, 12 + LEAD):
        for r in frag_read(j): b(r)
        b(qr.pop(0))
    slot_adv(b)
    for j in range(12, 24):
        b(mfma_att(j))
        if j + LEAD < 24:
            for r in frag_read(j + LEAD): b(r)
            b(qr.pop(0))
    assert not qr
    for o in addr_adv(): b(o)
    g.ext(add_lgkm(b.L))
    rare = []
    g(f"""
    s_mov_b32 s56, 0
    s_mov_b32 s58, 0
    A_unit:
    s_mov_b32 s55, 0
    A_loop:
    """)
    att_tick(g, "norm", rare)
    g(f"""
    s_waitcnt vmcnt(0)
    s_add_u32 s55, s55, 1
    s_cmp_lt_u32 s55, 15
    s_cbranch_scc1 A_loop
    """)
    g(f"""
    s_add_u32 s56, s56, 1
    s_cmp_eq_u32 s56, 4
    s_cbranch_scc1 A_done
    """)
    att_tick(g, "t15", rare, OPT['ost'])
    zero_O(g)
    reset_state(g)
    g("s_branch A_unit\nA_done:")
    att_tick(g, "last", rare, OPT['ost3'])
    peers(g, "v1", "v2", "v3")
    g(f"""
    v_lshlrev_b32 v1, 10, v1
    v_mov_b32 v2, 1
    s_mul_i32 s52, s39, 3
    s_add_u32 s52, s52, s3
    s_lshl_b32 s52, s52, 2
    s_add_u32 s52, s52, {FLOFF + 384}
    v_lshrrev_b32 v3, 4, {LANE}
    v_min_u32 v3, 2, v3
    v_mul_u32_u24 v3, 6144, v3
    v_and_b32 v4, 15, {LANE}
    v_lshl_add_u32 v3, v4, 7, v3
    s_sub_u32 s53, s54, {4*UNIT}
    s_add_u32 s54, s53, {3*6144}
    s_waitcnt vmcnt(0)
    buffer_load_dword v5, v3, {SRD_WS}, s53 offen
    buffer_load_dword v5, v3, {SRD_WS}, s54 offen
    s_mov_b64 exec, 15
    buffer_store_dword v2, v1, {SRD_WS}, s52 offen sc1
    s_mov_b64 exec, -1
    """)
    stamp(g)
    fin(g)
    g(f"""
    A_touch:
    buffer_load_dword v100, v108, {SRD_X}, s60 offen
    buffer_load_dword v100, v107, {SRD_WQ}, s61 offen
    buffer_load_dword v100, v108, {SRD_X}, s60 offen offset:128
    s_cmp_eq_u32 s3, 2
    s_cbranch_scc1 A_touch2
    buffer_load_dword v100, v108, {SRD_X}, s60 offen offset:256
    buffer_load_dword v100, v108, {SRD_X}, s60 offen offset:384
    s_branch A_tr1
    A_touch2:
    buffer_load_dword v100, v109, {SRD_WQ}, s61 offen offset:768
    buffer_store_dwordx4 v[102:105], v106, {SRD_WS}, s62 offen sc1
    s_branch A_tr1
    """)
    for lab in rare: rare_path(g, lab)

LKV = 8; LWQ = 16; LX = 28; LWO = 32; LLIN = 52; LPOLL = 53; LPOFF = 54
LTQ = 55; LTW = 56; LTO = 57; LDUM = 58; LTX = 59; LSW = 60; LSIG = 61; LONE = 62; LRDY = 63; LOB = 64
LTAB = 70

def ld_qchunk(g, a="s67", b="s68", lds="s69"):
    for hh in range(2):
        for i in range(12):
            if i % 4 == 0:
                g(f"s_add_u32 m0, {lds}, {hh*12288 + 4096*(i//4)}")
                if i == 0: g(f"s_add_u32 s53, {a}, {hh*32*12288}")
            g(f"buffer_load_dwordx4 v{LWQ+i}, {SRD_WQ}, s53 offen offset:{1024*(i%4)} lds")
    for gi in range(3):
        g(f"s_add_u32 m0, {lds}, {24576 + 4096*gi}\ns_add_u32 s53, {b}, {gi*40960}")
        for i in range(4):
            g(f"buffer_load_dwordx4 v{LX+i}, {SRD_X}, s53 offen offset:{1024*i} lds")

def ld_ochunk(g, a="s67", b="s68", lds="s69"):
    for i in range(10):
        if i % 4 == 0: g(f"s_add_u32 m0, {lds}, {12288 + 1024*i}")
        g(f"buffer_load_dwordx4 v{LWO+i}, {SRD_WO}, {a} offen offset:{1024*(i%4)} lds")
    for bb in range(2):
        for i in range(6):
            if i % 3 == 0: g(f"s_add_u32 m0, {lds}, {6144*bb + 1024*i}\ns_add_u32 s53, {b}, {UNIT*bb + 1024*i}")
            g(f"buffer_load_dwordx4 v{LLIN}, {SRD_WS}, s53 offen offset:{1024*(i%3)} lds")

def ld_block(g, srd, soff, ldsoff):
    for i in range(12):
        if i % 4 == 0: g(f"s_add_u32 m0, s76, {ldsoff + 1024*i}\ns_add_u32 s53, {soff}, {1024*i}")
        g(f"buffer_load_dwordx4 v{LKV + i % 6}, {srd}, s53 offen offset:{1024*(i%4)} {OPT.get('kvp', 'nt')} lds")

def loader(g, S):
    g(f"L_loader:\ns_setprio {OPT['pl']}")
    mark(g, 0)
    load_table(g, range(NLF), LTAB)
    g(f"""
    v_lshrrev_b32 v1, 3, {LANE}
    v_and_b32 v2, 7, {LANE}
    """)
    for i in range(6):
        g(f"v_add_u32 v3, {8*i}, v1")
        div3(g, "v4", "v3")
        g(f"""
        v_mul_u32_u24 v5, 3, v4
        v_sub_u32 v5, v3, v5
        v_lshlrev_b32 v5, 7, v5
        """)
        emit_f(g, "v6", "v4", "v7")
        g(f"""
        v_xor_b32 v6, v6, v2
        v_lshl_add_u32 v5, v6, 4, v5
        v_mul_u32_u24 v4, 12288, v4
        v_add_u32 v4, v4, v5
        v_subrev_u32 v{LWQ+i}, {1024*(i%4)}, v4
        v_add_u32 v{LWQ+6+i}, {16*12288 - 1024*((i+6)%4)}, v4
        v_lshlrev_b32 v5, 7, v1
        v_lshl_add_u32 v{LKV+i}, v6, 4, v5
        """)
    for i in range(2):
        g(f"""
        v_add_u32 v3, {8*i}, v1
        v_bfe_u32 v4, v3, 1, 3
        v_xor_b32 v4, v4, v2
        v_mul_u32_u24 v3, 1280, v3
        v_lshl_add_u32 v3, v4, 4, v3
        v_subrev_u32 v{LX+i}, {1024*i}, v3
        v_add_u32 v{LX+2+i}, {16*1280 - 1024*(i+2)}, v3
        """)
    g(f"""
    s_mul_i32 s90, s36, 384
    s_mul_i32 s91, s37, 122880      ; x base
    s_mul_i32 s94, s50, {8*192*1280}
    s_mul_i32 s92, s39, 320
    s_add_u32 s92, s92, s94
    s_mul_i32 s93, s42, {16*UNIT}
    s_mul_i32 s89, s39, {UNIT}
    s_add_u32 s89, s89, s93
    s_mov_b32 s88, s89
    """)
    mark(g, 1)
    for c in S.pre_chunks:
        oa, ob = chunk_offs(c)
        g(f"""
        s_add_u32 s67, s90, {oa}
        s_add_u32 s68, s91, {ob}
        s_mov_b32 s69, {S.buf[S.tick_of[c]]}
        """)
        ld_qchunk(g)
    mark(g, 2)
    for i in range(5):
        g(f"""
        v_add_u32 v3, {64*i}, {LANE}
        v_mul_u32_u24 v4, 3277, v3
        v_lshrrev_b32 v4, 16, v4
        v_mul_u32_u24 v5, 20, v4
        v_sub_u32 v5, v3, v5
        v_lshrrev_b32 v6, 1, v4
        v_and_b32 v6, 2, v6
        v_xor_b32 v5, v5, v6
        v_mul_u32_u24 v4, 1280, v4
        v_lshl_add_u32 v4, v5, 4, v4
        """)
        for k in range(2):
            I = i + 5 * k
            d = k * 16 * 1280 - 1024 * (I % 4)
            g(f"v_add_u32 v{LWO+I}, {d}, v4" if d >= 0 else f"v_subrev_u32 v{LWO+I}, {-d}, v4")
    g(f"v_min_u32 v3, 11, {LANE}")
    div3(g, "v4", "v3")
    g(f"""
    v_mul_u32_u24 v5, 3, v4
    v_sub_u32 v5, v3, v5
    s_lshl_b32 s53, s37, 2
    v_add_u32 v4, s53, v4
    v_mul_u32_u24 v4, 12288, v4
    v_lshl_add_u32 v{LTQ}, v5, 7, v4
    v_min_u32 v3, 19, {LANE}
    v_cmp_lt_u32 vcc, 9, v3
    v_mov_b32 v4, 0
    v_mov_b32 v5, {192*1280 - 1280}
    v_cndmask_b32 v4, v4, v5, vcc
    v_lshl_add_u32 v4, v3, 7, v4
    s_mul_i32 s53, s41, 1280
    v_add_u32 v{LTW}, s53, v4
    s_lshr_b32 s53, s41, 4
    s_mul_i32 s53, s53, 48
    v_min_u32 v3, 47, {LANE}
    v_add_u32 v3, s53, v3
    v_mul_u32_u24 v{LTX}, 1280, v3
    v_min_u32 v3, 23, {LANE}
    v_lshlrev_b32 v{LTO}, 7, v3
    v_lshlrev_b32 v{LOB}, 7, {LANE}
    v_lshlrev_b32 v{LLIN}, 4, {LANE}
    v_and_b32 v3, 3, {LANE}
    v_lshlrev_b32 v{LPOFF}, 2, v3
    """)
    peers(g, f"v{LRDY}", "v3", "v4")
    g(f"""
    v_lshlrev_b32 v{LSIG}, 10, v{LRDY}
    v_mov_b32 v{LONE}, 1
    s_lshl_b32 s63, s2, 10
    s_add_u32 s63, s63, {FLOFF}
    s_lshl_b32 s49, s39, 2
    s_add_u32 s49, s49, {FLOFF}
    s_lshl_b32 s60, s37, 5
    s_add_u32 s60, s60, s36
    s_mul_i32 s60, s60, 196608      ; K/V base
    s_mov_b32 s55, 0                ; step
    s_and_b32 s61, s41, 7
    s_waitcnt vmcnt({min(63, NQI * len(S.pre_chunks))})
    """)
    def fetch(g, full=True):
        _sl[0] += 1
        n = _sl[0]
        for k in range(NLF): g(f"v_readlane_b32 s{66+k}, v{LTAB+2*k}, s55")
        g(f"""
        s_add_u32 s55, s55, 1
        s_cmp_eq_u32 s55, 64
        s_cbranch_scc1 LD_sw{n}
        LD_swr{n}:
        s_bitcmp1_b32 s66, 1
        s_cselect_b32 s53, s92, s90
        s_cselect_b32 s52, s93, s91
        s_add_u32 s67, s67, s53
        s_add_u32 s68, s68, s52
        s_lshr_b32 s77, s66, 24
        """)
        ool(f"LD_sw{n}:")
        for k in range(NLF): ool(f"v_mov_b32 v{LTAB+2*k}, v{LTAB+2*k+1}")
        ool(f"s_branch LD_swr{n}")
    ool = G()
    mark(g, 3)
    fetch(g)
    g(f"""
    s_waitcnt vmcnt({S.pre_wait})
    LD_disp:
    s_cmp_eq_u32 s77, 0
    s_cbranch_scc1 LD_gen
    s_cmp_eq_u32 s77, 2
    s_cbranch_scc1 LD_fo
    s_cmp_eq_u32 s77, 3
    s_cbranch_scc1 LD_end
    LD_fq:
    """)
    bar(g)
    ld_qchunk(g)
    fetch(g)
    g(f"""
    s_cmp_eq_u32 s77, 1
    s_waitcnt vmcnt({NQI})
    s_cbranch_scc1 LD_fq
    s_branch LD_disp
    LD_fo:
    """)
    bar(g)
    ld_ochunk(g)
    fetch(g)
    g(f"""
    s_cmp_eq_u32 s77, 2
    s_waitcnt vmcnt({NOI})
    s_cbranch_scc1 LD_fo
    s_branch LD_disp
    LD_gen:
    s_add_u32 s70, s70, s60
    s_add_u32 s71, s71, s60
    s_add_u32 s72, s72, s91
    s_add_u32 s73, s73, s90
    s_add_u32 s74, s74, s94
    s_add_u32 s75, s75, s89
    s_bfe_u32 s76, s66, 0x20014
    s_mul_i32 s76, s76, {KV_SLOT}
    s_mov_b32 s62, s66
    s_bitcmp1_b32 s66, 15
    s_cbranch_scc0 LD_nobar
    """)
    bar(g)
    fstamp(g, 0)
    g(f"""
    LD_nobar:
    s_and_b32 s53, s66, 0x4700
    s_cbranch_scc1 LD_misc
    LD_nomisc:
    s_bitcmp1_b32 s66, 1
    s_cbranch_scc1 LD_o
    s_bitcmp1_b32 s66, 0
    s_cbranch_scc0 LD_t
    """)
    ool(f"""
    LD_misc:
    s_bitcmp1_b32 s66, 8
    s_cbranch_scc0 LD_nosig
    s_mov_b64 exec, 15
    buffer_store_dword v{LONE}, v{LSIG}, {SRD_WS}, s49 offen sc1
    s_mov_b64 exec, -1
    s_add_u32 s49, s49, 128
    LD_nosig:
    s_bitcmp1_b32 s66, 9
    s_cbranch_scc0 LD_nordy
    buffer_load_ubyte v{LPOLL}, v{LRDY}, {SRD_DBG}, 0 offen sc1
    LD_nordy:
    s_bitcmp1_b32 s66, 10
    s_cbranch_scc0 LD_nopoll
    buffer_load_dword v{LPOLL}, v{LPOFF}, {SRD_WS}, s63 offen sc1
    LD_nopoll:
    s_bitcmp1_b32 s66, 14
    s_cbranch_scc0 LD_nomisc
    v_min_u32 v{LPOFF}, 11, {LANE}
    v_lshlrev_b32 v{LPOFF}, 2, v{LPOFF}
    s_branch LD_nomisc
    """)
    ld_qchunk(g)
    g("s_branch LD_t\nLD_o:")
    ld_ochunk(g)
    g("LD_t:")
    fstamp(g, 1)
    for b, (v, srd, so, pair) in enumerate(((LTX, SRD_X, "s72", 0), (LTQ, SRD_WQ, "s73", 1), (LTW, SRD_WO, "s74", 1), (LTO, SRD_WS, "s75", 1))):
        g(f"s_bitcmp1_b32 s66, {4+b}\ns_cbranch_scc0 LD_nt{b}")
        if pair and OPT['pair']:
            g(f"buffer_load_dword v{LDUM}, v{v}, {srd}, {so} offen {OPT['p1']}\nbuffer_load_dword v{LDUM}, v{v}, {srd}, {so} offen {OPT['p2']}")
        else:
            g(f"buffer_load_dword v{LDUM}, v{v}, {srd}, {so} offen")
        g(f"LD_nt{b}:")
    g(f"""
    s_bitcmp1_b32 s66, 23
    s_cbranch_scc1 LD_bt
    LD_btr:
    s_bitcmp1_b32 s66, 22
    s_cbranch_scc1 LD_rs
    LD_rsr:
    s_bitcmp1_b32 s66, 2
    s_cbranch_scc0 LD_nok
    """)
    ool("LD_bt:\ns_mov_b32 s53, s88")
    for k in range(5):
        if k == 4: ool("s_mov_b32 exec_hi, 0")
        ool(f"buffer_load_dword v{LDUM}, v{LOB}, {SRD_WS}, s53 offen\ns_add_u32 s53, s53, 8192")
    ool(f"s_mov_b64 exec, -1\ns_add_u32 s88, s88, {4*UNIT}\ns_branch LD_btr")
    ool(f"""
    LD_rs:
    s_mov_b64 exec, 1
    s_sub_u32 s61, s61, 1
    s_cbranch_scc1 LD_rs1
    buffer_load_dword v{LDUM}, v{LPOFF}, {SRD_X}, s91 offen
    s_branch LD_rs2
    LD_rs1:
    buffer_store_byte v{LONE}, v{LPOFF}, {SRD_DBG}, s2 offen sc1
    LD_rs2:
    s_mov_b64 exec, -1
    s_branch LD_rsr
    """)
    ld_block(g, SRD_K, "s70", 0)
    g(f"""
    LD_nok:
    s_bitcmp1_b32 s66, 3
    s_cbranch_scc0 LD_nov
    """)
    ld_block(g, SRD_V, "s71", 12288)
    g("LD_nov:")
    fetch(g)
    g(f"""
    s_bitcmp1_b32 s62, 13
    s_cbranch_scc0 LD_gen
    """)
    fstamp(g, 2)
    g("s_bfe_u32 s53, s62, 0x40010")
    for i, w in enumerate(S.waits):
        if i < len(S.waits) - 1:
            g(f"""
            s_cmp_lg_u32 s53, {i}
            s_cbranch_scc1 LD_w{i}
            s_waitcnt vmcnt({w})
            s_branch LD_chk
            LD_w{i}:
            """)
        else:
            g(f"s_waitcnt vmcnt({w})")
    g(f"""
    LD_chk:
    s_and_b32 s53, s62, 0x1800
    s_cbranch_scc0 LD_disp
    LD_spin:
    v_cmp_ne_u32 vcc, 1, v{LPOLL}
    s_cbranch_vccz LD_ok
    s_sleep {OPT['slp']}
    s_bitcmp1_b32 s62, 11
    s_cbranch_scc1 LD_sp2
    buffer_load_dword v{LPOLL}, v{LPOFF}, {SRD_WS}, s63 offen sc1
    s_waitcnt vmcnt(0)
    s_branch LD_spin
    LD_sp2:
    buffer_load_ubyte v{LPOLL}, v{LRDY}, {SRD_DBG}, 0 offen sc1
    s_waitcnt vmcnt(0)
    s_branch LD_spin
    LD_ok:
    s_bitcmp1_b32 s62, 12
    s_cselect_b32 s53, 128, 0
    s_add_u32 s63, s63, s53
    s_branch LD_disp
    LD_end:
    """)
    ffin(g)
    fin(g)
    g.ext(ool.L)

def peers(g, dst, t0, t1):
    g(f"""
    v_and_b32 {t0}, 1, {LANE}
    v_bfe_u32 {t1}, {LANE}, 1, 1
    v_lshl_add_u32 {t0}, {t1}, 4, {t0}
    s_lshl_b32 s53, s43, 1
    v_add_u32 {t0}, s53, {t0}
    v_lshlrev_b32 {t0}, 3, {t0}
    v_add_u32 {t0}, s40, {t0}
    v_and_b32 {t1}, 3, {LANE}
    s_and_b32 s53, s2, 0xfc
    v_add_u32 {t1}, s53, {t1}
    v_and_b32 {dst}, 4, {LANE}
    v_cmp_eq_u32 vcc, 0, {dst}
    v_cndmask_b32 {dst}, {t1}, {t0}, vcc
    """)

PA = 0; PF = 120; PTAB = 192; PT = 196; PW = 200; PX = 206; PO = 208; PWO = 209; PQS = 211; PH = 212

def proj(g, S):
    B0 = S.buf[0]
    g(f"L_proj:\ns_setprio {1 if OPT['dyn'] else OPT['pp']}")
    load_table(g, [NLF, NLF + 1], PTAB)
    g(f"""
    s_sub_u32 s46, s3, 4
    v_lshrrev_b32 v1, 4, {LANE}
    v_bfe_u32 v2, {LANE}, 2, 2
    v_bfe_u32 v3, {LANE}, 1, 1
    v_and_b32 v4, 1, {LANE}
    v_and_b32 v5, 15, {LANE}
    v_lshl_add_u32 v6, v1, 3, v2
    v_mul_u32_u24 v6, 384, v6
    v_lshl_add_u32 v6, v4, 3, v6
    v_bfe_u32 v7, {LANE}, 3, 1
    v_lshlrev_b32 v7, 2, v7
    v_and_b32 v8, 1, v1
    v_lshl_add_u32 v7, v8, 1, v7
    s_mul_i32 s47, s46, 3
    """)
    for dt in range(3):
        g(f"""
        s_add_u32 s48, s47, {dt}
        s_and_b32 s49, s48, 3
        s_lshl_b32 s49, s49, 1
        s_lshr_b32 s48, s48, 2
        s_lshl_b32 s48, s48, 7
        s_add_u32 s48, s48, {B0}
        """)
        for u in range(2):
            g(f"""
            v_add_u32 v9, s49, v3
            v_add_u32 v10, {u}, v7
            v_xor_b32 v9, v9, v10
            v_lshl_add_u32 v9, v9, 4, v6
            v_add_u32 v9, {4*384*u}, v9
            v_add_u32 v{PW + 2*dt + u}, s48, v9
            """)
    for s in range(2):
        g(f"""
        v_add_u32 v9, {4*s}, v1
        v_lshrrev_b32 v10, 1, v5
        v_xor_b32 v9, v9, v10
        v_lshlrev_b32 v10, 7, v5
        v_lshl_add_u32 v9, v9, 4, v10
        v_add_u32 v{PX+s}, {B0 + 24576}, v9
        """)
    g(f"""
    s_lshr_b32 s48, s46, 1
    s_mul_i32 s48, s48, 6144
    s_add_u32 s48, s48, {B0}
    v_lshlrev_b32 v9, 4, {LANE}
    v_add_u32 v{PO}, s48, v9
    v_lshl_add_u32 v9, v1, 2, v2
    v_mul_u32_u24 v9, 320, v9
    v_and_b32 v10, 3, {LANE}
    v_lshl_add_u32 v9, v10, 3, v9
    v_add_u32 v9, {B0 + 12288}, v9
    s_and_b32 s48, s46, 1
    s_mul_i32 s48, s48, 5
    v_xor_b32 v10, s48, v8
    v_lshl_add_u32 v{PWO}, v10, 5, v9
    s_add_u32 s48, s48, 1
    v_xor_b32 v10, s48, v8
    v_lshl_add_u32 v{PWO+1}, v10, 5, v9
    v_lshrrev_b32 v9, 1, v1
    v_lshl_add_u32 v9, v9, 5, v5
    v_lshlrev_b32 v9, 4, v9
    v_lshl_add_u32 v9, v8, 3, v9
    s_mul_i32 s48, s46, 3072
    s_add_u32 s48, s48, {PB0}
    v_add_u32 v{PQS}, s48, v9
    """)
    addrs = list(range(PW, PW + 6)) + [PX, PX + 1, PO, PWO, PWO + 1]
    def pack(g):
        for t in range(18):
            acc = PA + 4 * t
            g(f"""
            v_cvt_pk_bf16_f32 v{PH+2*t}, v{acc}, v{acc+1}
            v_cvt_pk_bf16_f32 v{PH+2*t+1}, v{acc+2}, v{acc+3}
            """)
    def write_hold(g):
        for dt in range(3):
            for qt in range(6):
                t = dt * 6 + qt
                g(f"ds_write_b64 v{PQS}, {vr(PH+2*t,2)} offset:{(qt>>1)*12288 + dt*1024 + (qt&1)*256}")
            g("s_waitcnt lgkmcnt(6)")
    def qreads(ks):
        fa = PF + 36 * ks
        rd = []
        for dt in range(3):
            for u in range(2):
                rd.append(f"ds_read_b64_tr_b16 {vr(fa + 4*dt + 2*u, 2)}, v{PW + 2*dt + u} offset:{12288*ks}")
        rd += [f"ds_read_b128 {vr(fa + 12 + 4*qt, 4)}, v{PX + ks} offset:{2048*qt}" for qt in range(6)]
        return rd
    def qmfma(ks, zero=False):
        m = []
        fa = PF + 36 * ks
        for qt in range(6):
            for dt in range(3):
                acc = PA + 4 * (dt * 6 + qt)
                m.append(f"v_mfma_f32_16x16x32_bf16 {vr(acc,4)}, {vr(fa+4*dt,4)}, {vr(fa+12+4*qt,4)}, {'0' if zero else vr(acc,4)}")
        return m
    OA = PF; OA2 = PF + 48
    OB = lambda qt: PF + 20 + 4 * qt if qt < 3 else PF + 36 + 4 * (qt - 3)
    def oreads(half):
        rb = [f"ds_read_b128 {vr(OB(qt), 4)}, v{PO} offset:{1024*qt}" for qt in range(3 * half, 3 * half + 3)]
        if half: return rb
        ra = []
        for nt in range(5):
            ra += [f"ds_read_b64_tr_b16 {vr(OA + 4*nt + 2*u, 2)}, v{PWO + (nt & 1)} offset:{5120*u + 64*(nt >> 1)}" for u in range(2)]
        return rb[:1] + ra + rb[1:]
    def omfma(half):
        m = []
        fa = OA2 if half else OA
        for qt in range(3 * half, 3 * half + 3):
            for nt in range(5):
                acc = PA + 4 * (qt * 5 + nt)
                m.append(f"v_mfma_f32_16x16x32_bf16 {vr(acc,4)}, {vr(fa+4*nt,4)}, {vr(OB(qt),4)}, {vr(acc,4)}")
        return m
    acopy = [f"v_mov_b32 v{OA2+k}, v{OA+k}" for k in range(20)]
    def q0order(rd): return rd[:2] + rd[6:7] + rd[2:6] + rd[7:]
    def weave(b, ms, fill, per=1, start=0):
        fill = list(fill)
        for i, m in enumerate(ms):
            b(m)
            if i >= start:
                for o in fill[:per]: b(o)
                fill = fill[per:]
        for o in fill: b(o)
    for r in range(72, 120): g(f"v_mov_b32 v{PA+r}, 0")
    ool = G()
    def fetch(g):
        _sl[0] += 1
        n = _sl[0]
        g(f"""
        v_readlane_b32 s53, v{PTAB}, s55
        v_readlane_b32 s54, v{PTAB+2}, s55
        s_add_u32 s55, s55, 1
        s_cmp_eq_u32 s55, 64
        s_cbranch_scc1 P_sw{n}
        P_swr{n}:
        s_lshr_b32 s56, s53, 16
        """)
        ool(f"""
        P_sw{n}:
        v_mov_b32 v{PTAB}, v{PTAB+1}
        v_mov_b32 v{PTAB+2}, v{PTAB+3}
        s_branch P_swr{n}
        """)
    advs = lambda regs: [f"v_add_u32 v{r}, s54, v{r}" for r in regs]
    mark(g, 0)
    g("s_mov_b32 s55, 0\ns_waitcnt vmcnt(0)")
    mark(g, 1)
    fetch(g)
    g(f"""
    P_disp:
    s_cmp_eq_u32 s56, 0
    s_cbranch_scc1 P_gen
    s_cmp_eq_u32 s56, 2
    s_cbranch_scc1 P_oo
    s_cmp_eq_u32 s56, 3
    s_cbranch_scc1 P_end
    P_qq:
    """)
    bar(g)
    b = G()
    weave(b, qmfma(1), q0order(qreads(0)))
    weave(b, qmfma(0), qreads(1) + advs(addrs), per=2)
    g.ext(add_lgkm(b.L, drain=False))
    fetch(g)
    g(f"""
    s_cmp_eq_u32 s56, 1
    s_waitcnt lgkmcnt(0)
    s_cbranch_scc1 P_qq
    s_branch P_disp
    P_oo:
    """)
    bar(g)
    b = G()
    weave(b, omfma(1), oreads(0))
    weave(b, omfma(0), oreads(1) + advs(addrs[8:]) + acopy, per=2)
    g.ext(add_lgkm(b.L, drain=False))
    fetch(g)
    g(f"""
    s_cmp_eq_u32 s56, 2
    s_waitcnt lgkmcnt(0)
    s_cbranch_scc1 P_oo
    s_branch P_disp
    P_gen:
    """)
    bar(g)
    g("s_bitcmp1_b32 s53, 7\ns_cbranch_scc0 P_gw")
    write_hold(g)
    g("s_waitcnt lgkmcnt(0)\nP_gw:")
    g("s_bitcmp1_b32 s53, 0\ns_cbranch_scc0 P_g0")
    for r in qreads(0): g(r)
    g("P_g0:\ns_bitcmp1_b32 s53, 1\ns_cbranch_scc0 P_g0b")
    for r in oreads(0): g(r)
    g(f"""
    P_g0b:
    s_bitcmp1_b32 s53, 8
    s_cbranch_scc0 P_g1
    P_flush:
    """)
    for m in qmfma(1): g(m)
    g(f"""
    P_g1:
    s_bitcmp1_b32 s53, 9
    s_cbranch_scc0 P_g2
    """)
    for m in omfma(1): g(m)
    g(f"""
    P_g2:
    s_bitcmp1_b32 s53, 2
    s_cbranch_scc0 P_np
    """)
    pack(g)
    g(f"""
    P_np:
    s_waitcnt lgkmcnt(0)
    s_bitcmp1_b32 s53, 0
    s_cbranch_scc0 P_g3
    """)
    for r in qreads(1): g(r)
    g("s_bitcmp1_b32 s53, 5\ns_cbranch_scc1 P_gz")
    for m in qmfma(0): g(m)
    g("s_branch P_g3\nP_gz:")
    for m in qmfma(0, True): g(m)
    g(f"""
    P_g3:
    s_bitcmp1_b32 s53, 1
    s_cbranch_scc0 P_post
    """)
    for r in oreads(1): g(r)
    weave(g, omfma(0), acopy, per=2)
    g(f"""
    P_post:
    s_waitcnt lgkmcnt(0)
    s_bitcmp1_b32 s53, 4
    s_cbranch_scc0 P_nf
    s_mov_b32 s53, 12
    s_branch P_flush
    P_nf:
    s_bitcmp1_b32 s53, 3
    s_cbranch_scc0 P_nw
    """)
    write_hold(g)
    g(f"""
    P_nw:
    s_bitcmp1_b32 s53, 6
    s_cbranch_scc0 P_next
    """)
    for r in range(72): g(f"v_mov_b32 v{PA+r}, 0")
    g("P_next:")
    for o in advs(addrs): g(o)
    fetch(g)
    g(f"""
    s_waitcnt lgkmcnt(0)
    s_branch P_disp
    P_end:
    """)
    stamp(g)
    for m in omfma(1): g(m)
    KEEP = PF; RX = 0
    g(f"""
    v_lshlrev_b32 v{PT}, 4, {LANE}
    s_and_b32 s48, s2, 0xfc
    s_lshl_b32 s48, s48, 17
    s_lshl_b32 s49, s50, 15
    s_add_u32 s48, s48, s49
    s_lshl_b32 s49, s46, 13
    s_add_u32 s48, s48, s49
    s_add_u32 s48, s48, {POFF}
    """)
    XB = OPT['xbf']
    for gi in range(4):
        tiles = list(range(8 * gi, min(8 * gi + 8, 30)))
        g(f"""
        s_cmp_eq_u32 s50, {gi}
        s_cbranch_scc1 P_keep{gi}
        s_add_u32 s53, s48, {gi << 17}
        s_add_u32 s54, s53, 4096
        """)
        if XB:
            for i in range(len(tiles) // 2):
                a = PA + 4 * tiles[2 * i]
                d = 152 + 4 * ((4 * gi + i) % 8)
                for k in range(4): g(f"v_cvt_pk_bf16_f32 v{d+k}, v{a+2*k}, v{a+2*k+1}")
                g(f"buffer_store_dwordx4 {vr(d,4)}, v{PT}, {SRD_WS}, s53 offen offset:{1024*i} {OPT['pst']}")
        else:
            for i, t in enumerate(tiles):
                g(f"buffer_store_dwordx4 {vr(PA+4*t,4)}, v{PT}, {SRD_WS}, {'s53' if i < 4 else 's54'} offen offset:{1024*(i%4)} {OPT['pst']}")
        g(f"P_kr{gi}:")
        ool(f"P_keep{gi}:")
        for i, t in enumerate(tiles):
            for k in range(4): ool(f"v_mov_b32 v{KEEP+4*i+k}, v{PA+4*t+k}")
        ool(f"s_branch P_kr{gi}")
    g(f"""
    v_and_b32 v{PT+2}, 15, {LANE}
    v_mul_u32_u24 v{PT+2}, 2560, v{PT+2}
    v_lshrrev_b32 v{PT+3}, 4, {LANE}
    v_lshl_add_u32 v{PT+2}, v{PT+3}, 3, v{PT+2}
    v_and_b32 v{PT+3}, 3, {LANE}
    s_and_b32 s53, s2, 0xfc
    v_add_u32 v{PT+1}, s53, v{PT+3}
    v_lshlrev_b32 v{PT+1}, 10, v{PT+1}
    v_lshlrev_b32 v{PT+3}, 2, v{PT+3}
    v_mov_b32 v{PW}, 1
    s_lshl_b32 s49, s46, 7
    s_lshl_b32 s57, s50, 2
    s_add_u32 s57, s57, s49
    s_add_u32 s57, s57, {FLOFF + 512}
    s_lshl_b32 s58, s2, 10
    s_add_u32 s58, s58, s49
    s_add_u32 s58, s58, {FLOFF + 512}
    s_lshl_b32 s48, s2, 17
    s_lshl_b32 s49, s46, 13
    s_add_u32 s48, s48, s49
    s_add_u32 s48, s48, {POFF}
    s_lshl_b32 s59, 1, s50
    s_waitcnt vmcnt(0)
    s_mov_b64 exec, 15
    buffer_store_dword v{PW}, v{PT+1}, {SRD_WS}, s57 offen sc1
    s_mov_b64 exec, -1
    """)
    stamp(g)
    NL = 4 if XB else 8
    g(f"""
    P_xs:
    buffer_load_dword v{PW+1}, v{PT+3}, {SRD_WS}, s58 offen sc1
    s_waitcnt vmcnt(0)
    v_cmp_eq_u32 vcc, 1, v{PW+1}
    s_andn2_b32 s60, vcc_lo, s59
    s_and_b32 s60, s60, 15
    s_cbranch_scc1 P_xg
    s_sleep {OPT['slp']}
    s_branch P_xs
    P_xg:
    s_or_b32 s59, s59, s60
    """)
    for k in range(4):
        g(f"""
        s_bitcmp1_b32 s60, {k}
        s_cbranch_scc0 P_xl{k}
        s_add_u32 s53, s48, {k << 15}
        s_add_u32 s54, s53, 4096
        """)
        for i in range(NL):
            g(f"buffer_load_dwordx4 {vr(RX + 4*NL*k + 4*i, 4)}, v{PT}, {SRD_WS}, {'s53' if i < 4 else 's54'} offen offset:{1024*(i%4)} {OPT['pld']}")
        g(f"P_xl{k}:")
    g(f"""
    s_cmp_lg_u32 s59, 15
    s_cbranch_scc1 P_xs
    s_lshl_b32 s48, s43, 1
    s_lshr_b32 s49, s46, 1
    s_add_u32 s48, s48, s49
    s_mul_i32 s48, s48, {96*2560}
    s_mul_i32 s49, s38, 1280
    s_add_u32 s48, s48, s49
    s_mul_i32 s49, s39, 320
    s_add_u32 s48, s48, s49
    s_and_b32 s49, s46, 1
    s_mul_i32 s49, s49, 160
    s_add_u32 s48, s48, s49
    s_lshl_b32 s55, s50, 3
    s_waitcnt vmcnt(0)
    """)
    assert XB
    for k in range(4):
        g(f"s_cmp_eq_u32 s50, {k}\ns_cbranch_scc1 P_xa{k}")
        for r in range(32):
            src = RX + 4 * NL * k + r // 2
            tmp = PW + (r & 3)
            g(f"v_and_b32 v{tmp}, 0xffff0000, v{src}" if r & 1 else f"v_lshlrev_b32 v{tmp}, 16, v{src}")
            g(f"v_add_f32 v{KEEP+r}, v{KEEP+r}, v{tmp}")
        g(f"P_xa{k}:")
    for i in range(8):
        if i == 6: g("s_cmp_eq_u32 s50, 3\ns_cbranch_scc1 P_fin")
        g(f"""
        s_mul_i32 s49, s55, 52
        s_lshr_b32 s49, s49, 8
        s_mul_i32 s53, s49, 5
        s_sub_u32 s53, s55, s53
        s_mul_i32 s49, s49, {16*2560}
        s_lshl_b32 s53, s53, 5
        s_add_u32 s53, s53, s49
        s_add_u32 s53, s53, s48
        s_add_u32 s55, s55, 1
        v_cvt_pk_bf16_f32 v{PH+2*i}, v{KEEP+4*i}, v{KEEP+4*i+1}
        v_cvt_pk_bf16_f32 v{PH+2*i+1}, v{KEEP+4*i+2}, v{KEEP+4*i+3}
        buffer_store_dwordx2 {vr(PH+2*i,2)}, v{PT+2}, {SRD_OUT}, s53 offen {OPT.get('outp', '')}
        """)
    g("P_fin:")
    fin(g)
    g.ext(ool.L)

def build():
    S = schedule()
    if "-s" in sys.argv:
        for i, s in enumerate(S.steps): print(i, s, file=sys.stderr)
        print("waits", S.waits, file=sys.stderr)
    g = G()
    common(g)
    attention(g)
    loader(g, S)
    proj(g, S)
    g("L_end:\ns_endpgm")
    if OPT.get('nomfma'):
        k = 0
        for i, l in enumerate(g.L):
            if "v_mfma" in l and not l.rstrip().endswith(", 0"):
                k += 1
                if k % OPT['nomfma'] == 0: g.L[i] = "    s_nop 1"
    if OPT.get('fake16'):
        import re
        out = []; k = 0
        for l in g.L:
            m = re.match(r"\s*v_mfma_f32_32x32x16_bf16 v\[(\d+):\d+\], (\S+), (\S+), (\S+)", l)
            if m and m.group(4) != "0":
                d = int(m.group(1)); k += 1
                for q in range(2):
                    r = d + 4 * ((2 * (k // 1) + q + 2 * (k // 6)) % 4)
                    out.append(f"    v_mfma_f32_16x16x32_bf16 v[{r}:{r+3}], {m.group(2)}, {m.group(3)}, v[{r}:{r+3}]")
            else: out.append(l)
        g.L = out
    lines, n = fix_hazards(g.L, verbose="-v" in sys.argv)
    print("nop states inserted:", n, " lines:", len(lines), "steps", len(S.steps), file=sys.stderr)
    lines.append(".p2align 8")
    lines.append(".type L_table,@object")
    lines.append("L_table:")
    for f in S.tab:
        for i in range(0, 128, 8):
            lines.append("    .long " + ", ".join("0x%x" % x for x in f[i:i+8]))
    lines.append("L_tabend:")
    lines.append(".size L_table, %d" % (len(S.tab) * 512))
    return wrap(["@launch grid=(256,1,1) block=(512,1,1) lds=163840"], [(NAME + "_kernel", "\n".join(lines) + "\n", 256, 102, 256)])

if __name__ == "__main__":
    out = sys.argv[1]
    if "--stamps" in sys.argv: STAMPS = True
    for a in sys.argv:
        if a.startswith("--o:"):
            k, v = a[4:].split("=")
            OPT[k] = v.replace("+", " ") if not v.lstrip("-").isdigit() else int(v)
    open(out, "w").write(build())
```
